```python
import torch

def _softmax(x, axis=-1):
    return torch.softmax(x, dim=axis)
def _gelu(x):
    return torch.nn.functional.gelu(x, approximate="tanh")
def _silu(x):
    return torch.nn.functional.silu(x)
def _sigmoid(x):
    return torch.sigmoid(x)
def _layernorm(x, axis=-1, eps=1e-5):
    m = x.mean(dim=axis, keepdim=True)
    v = x.var(dim=axis, keepdim=True, unbiased=False)
    return (x - m) / torch.sqrt(v + eps)
def _scatter_add(tgt, idx, src, axis=0):
    return tgt.clone().index_add_(axis, idx, src)
def _segment_sum(src, seg, n):
    out = torch.zeros((n,) + src.shape[1:], dtype=src.dtype)
    return out.index_add_(0, seg, src)
def _pad(x, pw):
    flat = tuple(v for pair in reversed(pw) for v in pair)
    return torch.nn.functional.pad(x, flat)

kernel_name = 'gated_mix__ssm_conv_s4__glu_gated_glu__prompt'

def setup_inputs():

    _w = (lambda a: (lambda t: t.to(torch.bfloat16) if t.is_floating_point() else t)(torch.as_tensor(a)))
    def _A_setup():
        B, L, D, N = 1, 2048, 512, 128
        A_re = -(lambda _x: torch.exp(torch.as_tensor(_x)))((lambda *s: torch.randn(*s, dtype=torch.bfloat16) * 6.4)(D, N))
        A_im = torch.pi * (lambda *s: torch.randn(*s, dtype=torch.bfloat16) * 0.1)(D, N)
        B_re = (lambda *s: torch.randn(*s, dtype=torch.bfloat16) * 0.2)(D, N)
        B_im = (lambda *s: torch.randn(*s, dtype=torch.bfloat16) * 0.2)(D, N)
        C_re = (lambda *s: torch.randn(*s, dtype=torch.bfloat16) * 0.2)(D, N)
        C_im = (lambda *s: torch.randn(*s, dtype=torch.bfloat16) * 0.2)(D, N)
        log_dt = (lambda *s: torch.randn(*s, dtype=torch.bfloat16) * 0.1)(D) * 0.5 - 4.0
        Dskip = (lambda *s: torch.randn(*s, dtype=torch.bfloat16) * 0.1)(D)
        return {
            "u": _w((lambda *s: torch.randn(*s, dtype=torch.bfloat16) * 0.05)(B, L, D)),
            "A_re": _w(A_re),
            "A_im": _w(A_im),
            "B_re": _w(B_re),
            "B_im": _w(B_im),
            "C_re": _w(C_re),
            "C_im": _w(C_im),
            "log_dt": _w(log_dt),
            "Dskip": _w(Dskip),
        }
    _A_in = _A_setup()

    def _B_setup():
        B, S, D, F = 1, 2048, 512, 1792
        return {
            "x": _w((lambda *s: torch.randn(*s, dtype=torch.bfloat16) * 0.05)(B, S, D)),
            "w_gate": _w((lambda *s: torch.randn(*s, dtype=torch.bfloat16) * 0.4)(D, F)),
            "w_up": _w((lambda *s: torch.randn(*s, dtype=torch.bfloat16) * 0.05)(D, F)),
            "w_down": _w((lambda *s: torch.randn(*s, dtype=torch.bfloat16) * 0.05)(F, D)),
        }
    _B_in = _B_setup()

    return {
        "A_u": _A_in["u"],
        "A_A_re": _A_in["A_re"],
        "A_A_im": _A_in["A_im"],
        "A_B_re": _A_in["B_re"],
        "A_B_im": _A_in["B_im"],
        "A_C_re": _A_in["C_re"],
        "A_C_im": _A_in["C_im"],
        "A_log_dt": _A_in["log_dt"],
        "A_Dskip": _A_in["Dskip"],
        "B_x": _B_in["x"],
        "B_w_gate": _B_in["w_gate"],
        "B_w_up": _B_in["w_up"],
        "B_w_down": _B_in["w_down"],
        "gate_w": _w((lambda *s: torch.randn(*s, dtype=torch.bfloat16) * 0.05)(512) * 16.0),
    }

def reference(A_u, A_A_re, A_A_im, A_B_re, A_B_im, A_C_re, A_C_im, A_log_dt, A_Dskip, B_x, B_w_gate, B_w_up, B_w_down, gate_w):
    def _A_ref(u, A_re, A_im, B_re, B_im, C_re, C_im, log_dt, Dskip):
        Bsz, L, D = u.shape
        dt = torch.exp(log_dt)[:, None]
        A = A_re + 1j * A_im
        Bc = B_re + 1j * B_im
        Cc = C_re + 1j * C_im
        logdA = dt * A
        dB = dt * Bc
        l = (lambda x, dt: x.to(dt))(torch.arange(L), A_re.dtype)
        P = torch.exp(logdA[:, :, None] * l[None, None, :])
        K = torch.einsum("dn,dnl,dn->dl", Cc, P, dB).real
        L2 = 2 * L
        Kp = _pad(K, ((0, 0), (0, L)))
        up = (lambda x, *d: x.permute(*d))(u, 0, 2, 1)
        up = _pad(up, ((0, 0), (0, 0), (0, L)))
        Kf = (lambda x, axes=(-2,-1): torch.fft.rfft2(x.float(), dim=axes))(Kp[:, None, :], axes=(-2, -1))
        Uf = (lambda x, axes=(-2,-1): torch.fft.rfft2(x.float(), dim=axes))(up[:, :, None, :], axes=(-2, -1))
        Yf = Uf * Kf[None, :, :, :]
        y = (lambda x, s, axes=(-2,-1): torch.fft.irfft2(x, s=s, dim=axes).to(torch.bfloat16))(Yf, (1, L2), axes=(-2, -1))[:, :, 0, :L]
        y = (lambda x, *d: x.permute(*d))(y, 0, 2, 1) + u * Dskip[None, None, :]
        return y

    def _B_ref(x, w_gate, w_up, w_down):
        g = torch.einsum("bsd,df->bsf", x, w_gate)
        u = torch.einsum("bsd,df->bsf", x, w_up)
        h = _sigmoid(g) * u
        return torch.einsum("bsf,fd->bsd", h, w_down)

    x = A_u
    g = _sigmoid((x * gate_w).sum(-1, keepdims=True))
    a = _A_ref(x, A_A_re, A_A_im, A_B_re, A_B_im, A_C_re, A_C_im, A_log_dt, A_Dskip)
    b = _B_ref(x, B_w_gate, B_w_up, B_w_down)
    return g * a + (1 - g) * b
```

```python
import re

TRANS = ("v_exp_f32", "v_log_f32", "v_rcp_f32", "v_rsq_f32", "v_sqrt_f32", "v_sin_f32", "v_cos_f32")

def _regs(tok):
    tok = tok.strip()
    tok = tok.lstrip("-")
    m = re.fullmatch(r"abs\((.*)\)|\|(.*)\|", tok)
    if m: tok = m.group(1) or m.group(2)
    m = re.fullmatch(r"([vsa])(\d+)", tok)
    if m: return {(m.group(1), int(m.group(2)))}
    m = re.fullmatch(r"([vsa])\[(\d+):(\d+)\]", tok)
    if m: return {(m.group(1), i) for i in range(int(m.group(2)), int(m.group(3)) + 1)}
    if tok == "vcc": return {("s", 106), ("s", 107)}
    if tok == "vcc_lo": return {("s", 106)}
    if tok == "vcc_hi": return {("s", 107)}
    if tok == "exec": return {("s", 126), ("s", 127)}
    if tok == "m0": return {("s", 124)}
    return set()

class Ins:
    def __init__(self, text):
        self.text = text
        t = text.split(";")[0].strip()
        self.is_label = t.endswith(":")
        self.is_dir = t.startswith(".")
        self.mn = ""
        self.ops = []
        self.defs, self.uses = set(), set()
        self.kind = "none"
        if not t or self.is_label or self.is_dir: return
        parts = t.split(None, 1)
        self.mn = mn = parts[0]
        rest = parts[1] if len(parts) > 1 else ""
        ops, depth, cur = [], 0, ""
        for ch in rest:
            if ch in "[(": depth += 1
            if ch in "])": depth -= 1
            if ch == "," and depth == 0: ops.append(cur.strip()); cur = ""
            else: cur += ch
        if cur.strip(): ops.append(cur.strip())
        self.mods = ""
        if ops:
            sp = ops[-1].split(None, 1)
            if len(sp) > 1 and not ops[-1].startswith("hwreg") and not mn.startswith("s_waitcnt"):
                ops[-1] = sp[0]; self.mods = sp[1]
        self.ops = ops
        R = [_regs(o) for o in ops]
        U = lambda l: set().union(*l) if l else set()
        if mn.startswith("v_mfma"):
            self.kind = "mfma"; self.defs = R[0]; self.a = R[1]; self.b = R[2]; self.c = R[3]; self.uses = R[1] | R[2] | R[3]
            self.passes = 8 if "32x32x16" in mn else 4
            assert "32x32x16" in mn or "16x16x32" in mn, mn
        elif mn.startswith("v_"):
            self.kind = "valu"
            if mn.startswith("v_cmp"):
                self.defs = R[0]; self.uses = U(R[1:])
            elif mn.startswith(("v_add_co", "v_sub_co", "v_addc_co", "v_subb_co", "v_mad_u64")):
                self.defs = R[0] | R[1]; self.uses = U(R[2:])
            elif mn.startswith("v_permlane") and "swap" in mn:
                self.defs = R[0] | R[1]; self.uses = R[0] | R[1]
            else:
                self.defs = R[0]; self.uses = U(R[1:])
                if mn.startswith(("v_fmac", "v_dot2c", "v_writelane", "v_pk_fmac")) or "dpp" in mn or "row_" in self.mods or "quad_perm" in self.mods or "UNUSED_PRESERVE" in self.mods:
                    self.uses |= R[0]
            self.trans = mn.replace("_e32", "").replace("_e64", "") in TRANS
            self.dpp = "_dpp" in mn or "row_" in self.mods or "quad_perm" in self.mods
            self.sdwa = "_sdwa" in mn
        elif mn.startswith("ds_"):
            self.kind = "ds"
            if mn.startswith(("ds_read", "ds_bpermute", "ds_permute", "ds_swizzle")) or "_rtn" in mn:
                self.defs = R[0]; self.uses = U(R[1:])
            else:
                self.uses = U(R)
        elif mn.startswith(("buffer_", "global_")):
            self.kind = "vmem"
            self.lds = bool(re.search(r"\blds\b", self.mods)) or "_lds_" in mn
            if mn.startswith(("buffer_inv", "buffer_wbl2")): pass
            elif "load" in mn and not self.lds:
                self.defs = R[0]; self.uses = U(R[1:])
            elif "atomic" in mn and "sc0" in self.mods:
                self.defs = R[0]; self.uses = U(R)
            else:
                self.uses = U(R)
            if self.lds: self.uses |= {("s", 124)}
            self.wide_store = ("store" in mn and ("x3" in mn or "x4" in mn))
            self.data = (R[0] if mn.startswith("buffer_") else (R[1] if len(R) > 1 else set())) if self.wide_store else set()
        elif mn.startswith("s_"):
            self.kind = "salu"
            if mn.startswith(("s_cmp", "s_cbranch", "s_branch", "s_waitcnt", "s_barrier", "s_nop", "s_endpgm", "s_sleep", "s_setprio", "s_setpc", "s_bitcmp")):
                self.uses = U(R)
            else:
                self.defs = R[0] if R else set(); self.uses = U(R[1:])
                if "saveexec" in mn: self.defs |= {("s", 126), ("s", 127)}
        else:
            raise ValueError("unknown instr " + text)

    def states(self):
        if self.kind == "none": return 0
        if self.mn == "s_nop": return int(self.ops[0], 0) + 1
        return 1

def need(p, c):
    n = 0
    vd = {r for r in p.defs if r[0] in "va"}
    sd = {r for r in p.defs if r[0] == "s"}
    if p.kind == "valu":
        if c.kind == "mfma" and vd & c.uses: n = max(n, 2)
        if c.kind == "valu":
            if p.trans and not c.trans and vd & c.uses: n = max(n, 1)
            if p.trans and c.trans and vd & c.uses: n = max(n, 1)
            if p.sdwa and vd & (c.uses | c.defs): n = max(n, 1)
            if sd & c.uses: n = max(n, 4 if c.mn.startswith(("v_readlane", "v_writelane")) else 2)
            if c.mn.startswith(("v_readfirstlane", "v_readlane")) and vd & c.uses: n = max(n, 1)
            if c.dpp and vd & c.uses: n = max(n, 2)
            if c.mn.startswith("v_permlane") and vd & c.uses: n = max(n, 2)
        if c.kind == "vmem" and sd & c.uses: n = max(n, 5)
        if c.kind == "salu" and sd & c.uses: n = max(n, 1)
        if p.trans and c.kind in ("vmem", "ds") and vd & c.uses: n = max(n, 1)
    if p.kind == "salu":
        if ("s", 124) in sd and c.kind == "vmem" and c.lds: n = max(n, 1)
        if ("s", 124) in sd and c.kind in ("valu", "ds") and ("s", 124) in c.uses: n = max(n, 1)
    if p.kind == "mfma":
        big = {4: 8, 8: 12}[p.passes]
        if c.kind == "mfma":
            if p.defs & (c.a | c.b): n = max(n, big)
            if p.defs & c.c and not (p.defs == c.c and p.passes == c.passes): n = max(n, {4: 6, 8: 10}[p.passes])
            if p.defs & c.defs and not (p.defs == c.defs and p.passes == c.passes): n = max(n, big)
        elif c.kind in ("valu", "vmem", "ds"):
            if p.defs & (c.uses | c.defs): n = max(n, big)
            if c.kind == "valu" and p.c & c.defs: n = max(n, {4: 3, 8: 7}[p.passes])
    if p.kind == "vmem" and p.wide_store:
        if p.data & c.defs: n = max(n, 2)
    return n

class Asm:
    def __init__(self):
        self.lines = []
    def __call__(self, s):
        for ln in s.strip("\n").split("\n"):
            ln = ln.strip()
            if ln: self.lines.append(ln)
    def label(self, name): self.lines.append(name + ":")
    def finish(self, report=None):
        ins = [Ins(l) for l in self.lines]
        WIN = 14
        changed = True
        rounds = 0
        while changed:
            changed = False; rounds += 1
            labels = {i.text.split(";")[0].strip()[:-1]: k for k, i in enumerate(ins) if i.is_label}
            preds = {}
            for k, i in enumerate(ins):
                if i.mn.startswith(("s_cbranch", "s_branch", "s_call")):
                    tgt = i.ops[-1]
                    if tgt in labels: preds.setdefault(labels[tgt], []).append(k)
            def back(k, dist, seen):
                j = k - 1
                while j >= 0 and dist < WIN:
                    p = ins[j]
                    if p.is_label and j in preds:
                        for b in preds[j]:
                            if (b, dist) not in seen:
                                seen.add((b, dist))
                                yield from back(b + 1, dist, seen)
                    if p.mn in ("s_branch", "s_endpgm", "s_setpc_b64") and j != k - 1 + 0 and False: return
                    if p.kind != "none":
                        yield p, dist
                        dist += p.states()
                    j -= 1
            for k, c in enumerate(ins):
                if c.kind == "none": continue
                worst = 0
                for p, dist in back(k, 0, set()):
                    w = need(p, c) - dist
                    if w > worst: worst = w; wp = p
                if worst > 0:
                    if report is not None: report.append(f"nop {worst} before [{c.text}] after [{wp.text}]")
                    ins.insert(k, Ins(f"s_nop {worst - 1}"))
                    changed = True
                    break
        out = []
        for i in ins:
            out.append(i.text if (i.is_label or i.is_dir) else "    " + i.text)
        return "\n".join(out)

class Regs:
    def __init__(self, kind, start, limit):
        self.kind, self.next, self.limit, self.hi = kind, start, limit, start
    def get(self, n=1, align=None):
        align = align or (1 if n == 1 else (2 if n == 2 else 4))
        self.next = (self.next + align - 1) // align * align
        r = self.next; self.next += n
        assert self.next <= self.limit, f"out of {self.kind} regs"
        self.hi = max(self.hi, self.next)
        return r
    def mark(self): return self.next
    def reset(self, m): self.next = m

def vr(b, n=1): return f"v{b}" if n == 1 else f"v[{b}:{b + n - 1}]"
def sr(b, n=1): return f"s{b}" if n == 1 else f"s[{b}:{b + n - 1}]"
```

```python
import sys, math
from asmlib import *

NAME = "gated_mix__ssm_conv_s4__glu_gated_glu__prompt"
WS_H, WS_UT, WS_Y2, WS_GATE, WS_STAMP = 0, 8 << 20, 10 << 20, 12 << 20, 16 << 20
WS_SIZE = 24 << 20
LOG2E = 0x3FB8AA3B; NLOG2E = 0xBFB8AA3B; INV2PI = 0x3E22F983
DIAG = len(sys.argv) > 2 and sys.argv[2] == "diag"

def srd(a, s, koff, size):
    a(f"s_load_dwordx2 s[{s}:{s+1}], s[0:1], {koff}")
    return [f"s_mov_b32 s{s+2}, {size}", f"s_mov_b32 s{s+3}, 0x20000"]

class Stamps:
    def __init__(self, a, base, kidx): self.a, self.base, self.n, self.kidx = a, base, 0, kidx
    def __call__(self):
        if DIAG:
            self.a(f"s_memtime s[{self.base + 2*self.n}:{self.base + 2*self.n + 1}]"); self.n += 1
    def flush(self, ws, swave, vt, nw):
        if not DIAG: return
        a = self.a
        a("s_waitcnt lgkmcnt(0)")
        a(f"s_mul_i32 s3, s2, {nw}\ns_add_u32 s3, s3, s{swave}\ns_lshl_b32 s3, s3, 6\ns_add_u32 s3, s3, {WS_STAMP + self.kidx * (1 << 20)}")
        for i in range(self.n):
            a(f"v_mov_b32 v{vt}, s{self.base + 2*i}\nv_mov_b32 v{vt+1}, {4*i}\nbuffer_store_dword v{vt}, v{vt+1}, s[{ws}:{ws+3}], s3 offen")

def k1():
    a = Asm(); V = Regs("v", 1, 256)
    X, WG, WU, WS, GW = 4, 8, 12, 16, 20
    sw, smb, sfb, sxb, swb, sw1k, st, st2, sc = 24, 25, 26, 27, 28, 29, 30, 31, 32
    S = Stamps(a, 40, 0)
    S()
    a("s_cmp_ge_u32 s2, 256\ns_cbranch_scc1 K1_end")
    post = srd(a, X, 0, 2097152) + srd(a, WG, 80, 1835008) + srd(a, WU, 88, 1835008) + srd(a, WS, 128, WS_SIZE) + srd(a, GW, 104, 1024)
    lane = V.get(); t0 = V.get(); t1 = V.get(); t2 = V.get()
    a(f"v_lshrrev_b32 v{t0}, 6, v0\nv_and_b32 v{lane}, 63, v0\nv_readfirstlane_b32 s{sw}, v{t0}")
    a("\n".join(post))
    a(f"s_and_b32 s{st}, s2, 7\ns_lshr_b32 s{st2}, s2, 3")
    a(f"s_cmp_ge_u32 s{st2}, 28\ns_cbranch_scc1 K1_aux")
    a(f"""s_mul_i32 s{smb}, s{st2}, 37
    s_lshr_b32 s{smb}, s{smb}, 8
    s_mul_i32 s{sfb}, s{smb}, 7
    s_sub_u32 s{sfb}, s{st2}, s{sfb}
    s_lshr_b32 s{st2}, s{st}, 1
    s_lshl_b32 s{st2}, s{st2}, 2
    s_add_u32 s{smb}, s{smb}, s{st2}
    s_and_b32 s{st}, s{st}, 1
    s_mul_i32 s{st}, s{st}, 7
    s_add_u32 s{sfb}, s{sfb}, s{st}
    s_lshl_b32 s{sxb}, s{smb}, 17
    s_lshl_b32 s{swb}, s{sfb}, 8
    s_lshl_b32 s{sw1k}, s{sw}, 10""")
    vox = V.get(); vow = V.get()
    a(f"""v_lshrrev_b32 v{t0}, 4, v{lane}
    s_lshl_b32 s{st}, s{sw}, 2
    v_add_u32 v{t1}, s{st}, v{t0}
    v_xor_b32 v{t2}, v{t1}, v{lane}
    v_and_b32 v{t2}, 7, v{t2}
    v_lshlrev_b32 v{t2}, 4, v{t2}
    v_lshrrev_b32 v{vox}, 3, v0
    v_lshl_add_u32 v{vox}, v{vox}, 10, v{t2}
    v_mul_u32_u24 v{vow}, 3584, v{t1}
    v_lshlrev_b32 v{t0}, 2, v{t0}
    v_xor_b32 v{t0}, v{t0}, v{lane}
    v_and_b32 v{t0}, 15, v{t0}
    v_lshl_add_u32 v{vow}, v{t0}, 4, v{vow}""")
    a("s_waitcnt lgkmcnt(0)")
    XR = 65536
    NXS, NWS = 3, 4
    issued = []
    def dma_x(j, hf):
        a(f"s_add_u32 m0, s{sw1k}, {XR + (j % NXS) * 16384 + hf * 8192}\ns_add_u32 s{st}, s{sxb}, {j * 128 + hf * 65536}")
        a(f"buffer_load_dwordx4 v{vox}, s[{X}:{X+3}], s{st} offen lds"); issued.append(("x", j, hf))
    def dma_w(c):
        a(f"s_add_u32 m0, s{sw1k}, {(c % NWS) * 16384}\ns_add_u32 s{st}, s{swb}, {c * 114688}")
        a(f"buffer_load_dwordx4 v{vow}, s[{WG}:{WG+3}], s{st} offen lds"); issued.append(("g", c))
        a(f"s_add_u32 m0, s{sw1k}, {(c % NWS) * 16384 + 8192}")
        a(f"buffer_load_dwordx4 v{vow}, s[{WU}:{WU+3}], s{st} offen lds"); issued.append(("u", c))
    def wait_chunk(c):
        needs = [("g", c), ("u", c), ("x", c // 2, 0), ("x", c // 2, 1)]
        last = max(issued.index(n) for n in needs)
        a(f"s_waitcnt vmcnt({len(issued) - 1 - last})")
    dma_x(0, 0); dma_x(0, 1); dma_w(0); dma_w(1); dma_x(1, 0); dma_x(1, 1); dma_w(2); dma_w(3); dma_x(2, 0); dma_x(2, 1)
    vax = [V.get() for _ in range(4)]; vaw = V.get()
    a(f"""v_and_b32 v{t0}, 31, v{lane}
    v_lshrrev_b32 v{t1}, 1, v{t0}
    v_and_b32 v{t1}, 7, v{t1}
    v_lshrrev_b32 v{t2}, 5, v{lane}
    v_xor_b32 v{t1}, v{t1}, v{t2}
    v_lshlrev_b32 v{t1}, 4, v{t1}
    v_lshl_add_u32 v{t1}, v{t0}, 7, v{t1}
    s_and_b32 s{st}, s{sw}, 1
    s_lshl_b32 s{st}, s{st}, 13
    s_add_u32 s{st}, s{st}, {XR}
    v_add_u32 v{vax[0]}, s{st}, v{t1}
    v_xor_b32 v{vax[1]}, 32, v{vax[0]}
    v_xor_b32 v{vax[2]}, 64, v{vax[0]}
    v_xor_b32 v{vax[3]}, 96, v{vax[0]}
    v_bfe_u32 v{t0}, v{lane}, 2, 2
    s_lshr_b32 s{st}, s{sw}, 1
    v_xor_b32 v{t1}, s{st}, v{t0}
    v_lshlrev_b32 v{t1}, 6, v{t1}
    v_lshl_add_u32 v{t0}, v{t2}, 3, v{t0}
    v_lshl_add_u32 v{vaw}, v{t0}, 8, v{t1}
    v_bfe_u32 v{t0}, v{lane}, 4, 1
    v_lshl_add_u32 v{vaw}, v{t0}, 5, v{vaw}
    v_and_b32 v{t0}, 3, v{lane}
    v_lshl_add_u32 v{vaw}, v{t0}, 3, v{vaw}""")
    acc = [V.get(16, 4) for _ in range(4)]
    F = [dict(x=[V.get(4), V.get(4)], g=V.get(4), u=V.get(4)) for _ in range(2)]
    def reads(n):
        f = F[n & 1]; c = n >> 1; j = n >> 2; s = n & 3
        wo = (c % NWS) * 16384 + (n & 1) * 4096; xo = (j % NXS) * 16384
        return [f"ds_read_b64_tr_b16 {vr(f['g'], 2)}, v{vaw} offset:{wo}",
                f"ds_read_b64_tr_b16 {vr(f['g'] + 2, 2)}, v{vaw} offset:{wo + 1024}",
                f"ds_read_b128 {vr(f['x'][0], 4)}, v{vax[s]} offset:{xo}",
                f"ds_read_b64_tr_b16 {vr(f['u'], 2)}, v{vaw} offset:{wo + 8192}",
                f"ds_read_b64_tr_b16 {vr(f['u'] + 2, 2)}, v{vaw} offset:{wo + 9216}",
                f"ds_read_b128 {vr(f['x'][1], 4)}, v{vax[s]} offset:{xo + 4096}"]
    def mfmas(n):
        f = F[n & 1]; r = []
        for tt in range(2):
            for m, k in (("g", 0), ("u", 1)):
                ac = vr(acc[2 * tt + k], 16)
                r.append(f"v_mfma_f32_32x32x16_bf16 {ac}, {vr(f[m], 4)}, {vr(f['x'][tt], 4)}, {ac if n else 0}")
        return r
    S()
    wait_chunk(0); a("s_barrier")
    S()
    a("\n".join(reads(0)))
    for n in range(32):
        m = mfmas(n)
        a("s_waitcnt lgkmcnt(0)")
        if n == 31:
            a("\n".join(m)); break
        rd = reads(n + 1)
        if n & 1:
            c1 = (n >> 1) + 1
            a(m[0]); wait_chunk(c1); a("s_barrier")
            a("\n".join(rd[:3])); a(m[1]); a("\n".join(rd[3:])); a(m[2])
            if c1 >= 2 and (c1 // 2 + 2) < 8: dma_x(c1 // 2 + 2, c1 & 1)
            if c1 + 3 < 16: dma_w(c1 + 3)
            a(m[3])
        else:
            a(m[0]); a("\n".join(rd[:3])); a(m[1]); a("\n".join(rd[3:])); a(m[2]); a(m[3])
    S()
    vst = V.get(); tmp = [V.get(8, 4) for _ in range(2)]; pk = [V.get(4) for _ in range(2)]
    a(f"""v_lshlrev_b32 v{vst}, 4, v{lane}
    s_and_b32 s{st}, s{sw}, 1
    s_lshl_b32 s{st}, s{st}, 1
    s_lshl_b32 s{st2}, s{smb}, 2
    s_add_u32 s{st}, s{st}, s{st2}
    s_mul_i32 s{st}, s{st}, 112
    s_lshl_b32 s{st2}, s{sfb}, 3
    s_add_u32 s{st}, s{st}, s{st2}
    s_and_b32 s{st2}, s{sw}, 6
    s_add_u32 s{st}, s{st}, s{st2}
    s_lshl_b32 s{st}, s{st}, 10
    s_add_u32 s{st2}, s{st}, {112 * 1024}
    s_mov_b32 s{sc}, {NLOG2E}""")
    for tt in range(2):
        for hf in range(2):
            g = acc[2 * tt] + 8 * hf; u = acc[2 * tt + 1] + 8 * hf; t = tmp[hf]; p = pk[hf]
            for i in range(8): a(f"v_mul_f32 v{t+i}, s{sc}, v{g+i}")
            for i in range(8): a(f"v_exp_f32 v{t+i}, v{t+i}")
            for i in range(8): a(f"v_add_f32 v{t+i}, 1.0, v{t+i}")
            for i in range(8): a(f"v_rcp_f32 v{t+i}, v{t+i}")
            for i in range(8): a(f"v_mul_f32 v{t+i}, v{t+i}, v{u+i}")
            for i in range(4): a(f"v_cvt_pk_bf16_f32 v{p+i}, v{t+2*i}, v{t+2*i+1}")
            a(f"buffer_store_dwordx4 {vr(p, 4)}, v{vst}, s[{WS}:{WS+3}], s{st2 if tt else st} offen offset:{WS_H + hf * 1024}")
    S()
    if DIAG: a("s_waitcnt vmcnt(0)"); S()
    S.flush(WS, sw, t0, 8)
    a("s_endpgm")
    a.label("K1_aux")
    V.reset(t2 + 1)
    sa = smb
    a(f"s_sub_u32 s{st2}, s{st2}, 28\ns_lshl_b32 s{st2}, s{st2}, 3\ns_add_u32 s{sa}, s{st2}, s{st}")
    v16 = V.get(); gw = V.get(4); rows = [V.get(4) for _ in range(8)]
    a(f"""v_lshlrev_b32 v{v16}, 4, v{lane}
    s_lshl_b32 s{st}, s{sa}, 16
    s_lshl_b32 s{st2}, s{sw}, 13
    s_add_u32 s{st}, s{st}, s{st2}
    s_add_u32 s{st2}, s{st}, 4096
    s_waitcnt lgkmcnt(0)
    buffer_load_dwordx4 {vr(gw, 4)}, v{v16}, s[{GW}:{GW+3}], 0 offen""")
    for r in range(8):
        a(f"buffer_load_dwordx4 {vr(rows[r], 4)}, v{v16}, s[{X}:{X+3}], s{st if r < 4 else st2} offen offset:{(r & 3) * 1024}")
    gf = V.get(8, 4); xa = V.get(); xb = V.get(); sums = V.get(8, 4); vw = V.get()
    a("s_waitcnt vmcnt(8)")
    for i in range(4):
        a(f"v_lshlrev_b32 v{gf+2*i}, 16, v{gw+i}\nv_and_b32 v{gf+2*i+1}, 0xffff0000, v{gw+i}")
    a(f"s_lshl_b32 s{sc}, s{sw}, 13\ns_and_b32 s{st}, s{sw}, 1\ns_lshl_b32 s{st}, s{st}, 7")
    a(f"v_xor_b32 v{vw}, s{st}, v{v16}\nv_add_u32 v{vw}, s{sc}, v{vw}")
    for r in range(8):
        a(f"s_waitcnt vmcnt({7 - r})")
        fx = (((r >> 2) & 1) * 2 + (r & 1)) * 32
        a(f"v_xor_b32 v{t0}, {fx}, v{vw}\nds_write_b128 v{t0}, {vr(rows[r], 4)} offset:{r * 1024}")
        for i in range(4):
            a(f"""v_lshlrev_b32 v{xa}, 16, v{rows[r]+i}
            v_and_b32 v{xb}, 0xffff0000, v{rows[r]+i}
            v_mul_f32 v{xa}, v{xa}, v{gf+2*i}
            v_mul_f32 v{xb}, v{xb}, v{gf+2*i+1}
            v_cvt_pk_bf16_f32 v{xa}, v{xa}, v{xb}
            v_and_b32 v{xb}, 0xffff0000, v{xa}
            v_lshlrev_b32 v{xa}, 16, v{xa}""")
            if i == 0: a(f"v_add_f32 v{sums+r}, v{xa}, v{xb}")
            else: a(f"v_add_f32 v{sums+r}, v{sums+r}, v{xa}\nv_add_f32 v{sums+r}, v{sums+r}, v{xb}")
    for mod in ("quad_perm:[1,0,3,2]", "quad_perm:[2,3,0,1]", "row_half_mirror", "row_mirror"):
        for r in range(8): a(f"v_add_f32_dpp v{sums+r}, v{sums+r}, v{sums+r} {mod} row_mask:0xf bank_mask:0xf")
    for r in range(8): a(f"v_add_f32_dpp v{sums+r}, v{sums+r}, v{sums+r} row_bcast:15 row_mask:0xa bank_mask:0xf")
    for r in range(8): a(f"v_add_f32_dpp v{sums+r}, v{sums+r}, v{sums+r} row_bcast:31 row_mask:0xc bank_mask:0xf")
    for r in range(8):
        a(f"v_readlane_b32 s{33+r}, v{sums+r}, 63")
    for r in range(8):
        a(f"v_writelane_b32 v{xa}, s{33+r}, {r}")
    a(f"""v_cvt_pk_bf16_f32 v{xa}, v{xa}, v{xa}
    v_lshlrev_b32 v{xa}, 16, v{xa}
    v_mul_f32 v{xa}, {NLOG2E}, v{xa}
    v_exp_f32 v{xa}, v{xa}
    v_add_f32 v{xa}, 1.0, v{xa}
    v_rcp_f32 v{xa}, v{xa}
    v_cvt_pk_bf16_f32 v{xa}, v{xa}, v{xa}
    v_lshlrev_b32 v{xa}, 16, v{xa}
    v_lshlrev_b32 v{xb}, 2, v{lane}
    s_lshl_b32 s{st}, s{sa}, 8
    s_lshl_b32 s{st2}, s{sw}, 5
    s_add_u32 s{st}, s{st}, s{st2}
    s_add_u32 s{st}, s{st}, {WS_GATE}
    s_mov_b64 exec, 0xff
    buffer_store_dword v{xa}, v{xb}, s[{WS}:{WS+3}], s{st} offen
    s_mov_b64 exec, -1
    s_waitcnt lgkmcnt(0)
    s_barrier""")
    va = V.get(); vo = V.get(); d0 = [V.get(4) for _ in range(8)]
    a(f"""v_bfe_u32 v{t0}, v{lane}, 2, 2
    v_lshrrev_b32 v{t1}, 4, v{lane}
    v_lshl_add_u32 v{va}, v{t0}, 2, v{t1}
    v_lshlrev_b32 v{va}, 10, v{va}
    v_and_b32 v{t2}, 1, v{t1}
    v_lshl_add_u32 v{t2}, v{t0}, 1, v{t2}
    v_lshlrev_b32 v{t2}, 5, v{t2}
    s_lshl_b32 s{st}, s{sw}, 7
    v_xor_b32 v{t2}, s{st}, v{t2}
    v_add_u32 v{va}, v{va}, v{t2}
    v_and_b32 v{t0}, 3, v{lane}
    v_lshl_add_u32 v{va}, v{t0}, 3, v{va}
    v_and_b32 v{t0}, 15, v{lane}
    v_lshlrev_b32 v{vo}, 12, v{t0}
    v_lshl_add_u32 v{vo}, v{t1}, 5, v{vo}
    s_lshl_b32 s{st}, s{sw}, 18
    s_lshl_b32 s{st2}, s{sa}, 7
    s_add_u32 s{st}, s{st}, s{st2}
    s_add_u32 s{st}, s{st}, {WS_UT}""")
    for db in range(4):
        a(f"v_xor_b32 v{t0}, {db * 32}, v{va}")
        for half in range(2):
            r = d0[2 * db + half]
            a(f"ds_read_b64_tr_b16 {vr(r, 2)}, v{t0} offset:{half * 32768}\nds_read_b64_tr_b16 {vr(r + 2, 2)}, v{t0} offset:{half * 32768 + 16384}")
        a("s_waitcnt lgkmcnt(0)")
        for half in range(2):
            a(f"buffer_store_dwordx4 {vr(d0[2 * db + half], 4)}, v{vo}, s[{WS}:{WS+3}], s{st} offen offset:{half * 16}")
        a(f"s_add_u32 s{st}, s{st}, 65536")
    a.label("K1_end")
    return a, V.hi, 114688

def k2():
    a = Asm(); V = Regs("v", 1, 256)
    P = [4, 8, 12, 16, 20, 24]; LDT, WS = 28, 32
    sw, st, st2, sd, sk, sl2e = 36, 37, 38, 39, 40, 41
    S = Stamps(a, 44, 1)
    S()
    L_PRM, L_KC, L_KK, L_U, L_R = 0, 4096, 16384, 33024, 42240
    KCP = 4160
    a("s_cmp_ge_u32 s2, 256\ns_cbranch_scc1 K2_end")
    post = []
    for i in range(6): post += srd(a, P[i], 8 + 8 * i, 131072)
    post += srd(a, LDT, 56, 1024) + srd(a, WS, 128, WS_SIZE)
    lane = V.get(); t0 = V.get(); t1 = V.get(); t2 = V.get(); t3 = V.get()
    a(f"v_lshrrev_b32 v{t0}, 6, v0\nv_and_b32 v{lane}, 63, v0\nv_readfirstlane_b32 s{sw}, v{t0}")
    a("\n".join(post))
    prm = V.get(6, 2); ldt = V.get(); ul = [V.get(4), V.get(4)]
    a(f"""v_lshlrev_b32 v{t0}, 1, v0
    s_lshl_b32 s{st}, s2, 9
    s_lshr_b32 s{sd}, s{sw}, 1
    s_lshl_b32 s{st2}, s2, 1
    s_add_u32 s{sd}, s{sd}, s{st2}
    s_lshl_b32 s{st2}, s{sd}, 1
    v_mov_b32 v{t1}, 0
    s_waitcnt lgkmcnt(0)
    buffer_load_ushort v{ldt}, v{t1}, s[{LDT}:{LDT+3}], s{st2} offen""")
    for i in range(6): a(f"buffer_load_ushort v{prm+i}, v{t0}, s[{P[i]}:{P[i]+3}], s{st} offen")
    a(f"""v_lshrrev_b32 v{t2}, 1, v{lane}
    v_lshlrev_b32 v{t2}, 7, v{t2}
    v_and_b32 v{t3}, 1, v{lane}
    v_lshl_add_u32 v{t2}, v{t3}, 4, v{t2}
    s_lshl_b32 s{st}, s{sd}, 12
    s_and_b32 s{st2}, s{sw}, 1
    s_lshl_b32 s{st2}, s{st2}, 5
    s_add_u32 s{st}, s{st}, s{st2}
    s_add_u32 s{st}, s{st}, {WS_UT}
    buffer_load_dwordx4 {vr(ul[0], 4)}, v{t2}, s[{WS}:{WS+3}], s{st} offen
    buffer_load_dwordx4 {vr(ul[1], 4)}, v{t2}, s[{WS}:{WS+3}], s{st} offen offset:64""")
    e0 = V.get(); e1 = V.get(); e2 = V.get(); eb = V.get(); idx = V.get(); g = V.get()
    a(f"""v_and_b32 v{idx}, 15, v{lane}
    v_lshrrev_b32 v{g}, 4, v{lane}
    v_cvt_f32_u32 v{e0}, v{idx}
    v_mul_f32 v{eb}, 0x41800000, v{e0}
    v_lshlrev_b32 v{t0}, 1, v{idx}
    v_add_u32 v{t0}, 256, v{t0}
    v_lshrrev_b32 v{t1}, 2, v{idx}
    v_lshlrev_b32 v{t1}, 8, v{t1}
    v_and_b32 v{t2}, 3, v{idx}
    v_lshl_add_u32 v{t1}, v{t2}, 2, v{t1}
    v_cmp_gt_u32 vcc, 8, v{idx}
    v_cndmask_b32 v{t0}, v{t1}, v{t0}, vcc
    v_cvt_f32_u32 v{e1}, v{t0}
    v_lshrrev_b32 v{t0}, 1, v{idx}
    v_lshlrev_b32 v{t0}, 8, v{t0}
    v_and_b32 v{t1}, 1, v{idx}
    v_lshl_add_u32 v{t0}, v{t1}, 3, v{t0}
    v_add_u32 v{t0}, 1024, v{t0}
    v_cvt_f32_u32 v{e2}, v{t0}""")
    z = V.get(4)
    a(f"v_mov_b32 v{z}, 0\nv_mov_b32 v{z+1}, 0\nv_mov_b32 v{z+2}, 0\nv_mov_b32 v{z+3}, 0")
    vu = V.get()
    a(f"""s_mul_i32 s{st}, s{sw}, {KCP}
    s_add_u32 s{st}, s{st}, {L_KK}
    v_lshlrev_b32 v{t0}, 4, v{lane}
    v_add_u32 v{t1}, s{st}, v{t0}
    s_mul_i32 s{st}, s{sw}, 2304
    s_add_u32 s{st}, s{st}, {L_U}
    v_add_u32 v{vu}, s{st}, v{t0}
    s_mov_b64 exec, 0xff
    ds_write_b128 v{t1}, {vr(z, 4)}
    ds_write_b128 v{vu}, {vr(z, 4)}
    ds_write_b128 v{vu}, {vr(z, 4)} offset:1152
    s_mov_b64 exec, -1""")
    pp = V.get(4)
    a(f"""s_mov_b32 s{sl2e}, {LOG2E}
    s_waitcnt vmcnt(2)
    v_lshlrev_b32 v{ldt}, 16, v{ldt}
    v_mul_f32 v{ldt}, s{sl2e}, v{ldt}
    v_exp_f32 v{ldt}, v{ldt}""")
    for i in range(6): a(f"v_lshlrev_b32 v{prm+i}, 16, v{prm+i}")
    a(f"""v_cvt_pk_bf16_f32 v{ldt}, v{ldt}, v{ldt}
    v_lshlrev_b32 v{ldt}, 16, v{ldt}
    v_mul_f32 v{pp}, v{ldt}, v{prm}
    v_mul_f32 v{pp+1}, v{ldt}, v{prm+1}
    v_mul_f32 v{prm+2}, v{ldt}, v{prm+2}
    v_mul_f32 v{prm+3}, v{ldt}, v{prm+3}
    v_mul_f32 v{pp}, s{sl2e}, v{pp}
    v_mul_f32 v{pp+1}, {INV2PI}, v{pp+1}
    v_mul_f32 v{pp+2}, v{prm+4}, v{prm+2}
    v_mul_f32 v{pp+3}, v{prm+4}, v{prm+3}
    v_fma_f32 v{pp+2}, -v{prm+5}, v{prm+3}, v{pp+2}
    v_fma_f32 v{pp+3}, v{prm+5}, v{prm+2}, v{pp+3}
    v_lshlrev_b32 v{t0}, 4, v0
    ds_write_b128 v{t0}, {vr(pp, 4)} offset:{L_PRM}
    s_waitcnt vmcnt(0)
    ds_write_b128 v{vu}, {vr(ul[0], 4)} offset:128
    ds_write_b128 v{vu}, {vr(ul[1], 4)} offset:{1152 + 128}""")
    S()
    vp = V.get(); PR = [V.get(4) for _ in range(4)]
    fa = [V.get(4) for _ in range(3)]; fb = V.get(4); kc = [V.get(4) for _ in range(3)]
    tm = [V.get(4) for _ in range(4)]
    a(f"s_lshl_b32 s{st}, s{sw}, 10\nv_lshlrev_b32 v{vp}, 6, v{g}\nv_add_u32 v{vp}, s{st}, v{vp}")
    for t in range(3):
        for i in range(4): a(f"v_mov_b32 v{kc[t]+i}, 0")
    a(f"s_mov_b32 s{sk}, 0")
    a.label("K2_kg")
    for i in range(4): a(f"ds_read_b128 {vr(PR[i], 4)}, v{vp} offset:{L_PRM + 16 * i}")
    a(f"v_add_u32 v{vp}, 256, v{vp}")
    for i in range(4):
        a(f"s_waitcnt lgkmcnt({3 - i})")
        p = PR[i]; es = [e0, e1, e2, eb]
        for k in range(4): a(f"v_mul_f32 v{tm[k]}, v{p}, v{es[k]}\nv_mul_f32 v{tm[k]+1}, v{p+1}, v{es[k]}")
        for k in range(4): a(f"v_exp_f32 v{tm[k]}, v{tm[k]}\nv_fract_f32 v{tm[k]+1}, v{tm[k]+1}")
        for k in range(4): a(f"v_cos_f32 v{tm[k]+2}, v{tm[k]+1}\nv_sin_f32 v{tm[k]+3}, v{tm[k]+1}")
        for k in range(4): a(f"v_mul_f32 v{tm[k]+2}, v{tm[k]}, v{tm[k]+2}\nv_mul_f32 v{tm[k]+3}, v{tm[k]}, v{tm[k]+3}")
        for k in range(3): a(f"v_cvt_pk_bf16_f32 v{fa[k]+i}, v{tm[k]+2}, v{tm[k]+3}")
        b = tm[3]
        a(f"""v_mul_f32 v{b}, v{b+2}, v{p+2}
        v_mul_f32 v{b+1}, v{b+2}, v{p+3}
        v_fma_f32 v{b}, -v{b+3}, v{p+3}, v{b}
        v_fma_f32 v{b+1}, v{b+3}, v{p+2}, v{b+1}
        v_cvt_pk_bf16_f32 v{fb+i}, v{b}, -v{b+1}""")
    for t in range(3): a(f"v_mfma_f32_16x16x32_bf16 {vr(kc[t], 4)}, {vr(fa[t], 4)}, {vr(fb, 4)}, {vr(kc[t], 4)}")
    a(f"s_add_u32 s{sk}, s{sk}, 1\ns_cmp_lt_u32 s{sk}, 4\ns_cbranch_scc1 K2_kg")
    S()
    a(f"""s_mul_i32 s{st}, s{sw}, 3072
    s_add_u32 s{st}, s{st}, {L_KC}
    v_lshlrev_b32 v{t0}, 6, v{idx}
    v_lshl_add_u32 v{t0}, v{g}, 4, v{t0}
    v_add_u32 v{t0}, s{st}, v{t0}
    v_lshlrev_b32 v{t1}, 5, v{idx}
    v_lshl_add_u32 v{t1}, v{g}, 4, v{t1}
    v_lshlrev_b32 v{t2}, 4, v{idx}
    v_lshl_add_u32 v{t2}, v{g}, 8, v{t2}
    v_cmp_gt_u32 vcc, 2, v{g}
    v_cndmask_b32 v{t1}, v{t2}, v{t1}, vcc
    v_add_u32 v{t1}, s{st}, v{t1}
    v_lshlrev_b32 v{t2}, 3, v{idx}
    v_lshl_add_u32 v{t2}, v{g}, 8, v{t2}
    v_add_u32 v{t2}, s{st}, v{t2}
    ds_write_b128 v{t0}, {vr(kc[0], 4)}
    ds_write_b128 v{t1}, {vr(kc[1], 4)} offset:1024
    ds_write_b64 v{t2}, {vr(kc[2], 2)} offset:2048
    ds_write_b64 v{t2}, {vr(kc[2] + 2, 2)} offset:{2048 + 128}
    s_waitcnt lgkmcnt(0)
    s_barrier""")
    m0_ = V.mark()
    E = [V.get(4) for _ in range(8)]; vk = V.get(); o = V.get(2)
    a(f"""s_and_b32 s{st}, s{sw}, 2
    s_mul_i32 s{st2}, s{st}, {KCP}
    s_mul_i32 s{st}, s{st}, 3072
    s_add_u32 s{st}, s{st}, {L_KC}
    s_add_u32 s{st2}, s{st2}, {L_KK + 32}
    v_lshlrev_b32 v{vk}, 3, v{lane}
    v_add_u32 v{vk}, s{st2}, v{vk}
    v_add_u32 v{t3}, {KCP + 4}, v{vk}
    s_bitcmp1_b32 s{sw}, 0
    s_cbranch_scc1 K2_exp1""")
    def put(b, r0, r1, r2, r3):
        a(f"""v_cvt_pk_bf16_f32 v{o}, v{r0}, v{r1}
        v_cvt_pk_bf16_f32 v{o+1}, v{r2}, v{r3}
        ds_write_b64 v{vk}, {vr(o, 2)} offset:{512 * b}
        ds_write_b32 v{t3}, v{o} offset:{512 * b}
        ds_write_b32 v{t3}, v{o+1} offset:{512 * b + 4}""")
    a(f"""v_lshlrev_b32 v{t0}, 4, v{lane}
    v_add_u32 v{t0}, s{st}, v{t0}
    v_lshlrev_b32 v{t1}, 3, v{lane}
    v_add_u32 v{t1}, s{st}, v{t1}
    v_lshlrev_b32 v{t2}, 2, v{lane}
    v_add_u32 v{t2}, s{st}, v{t2}""")
    for pa in range(2):
        off = pa * 3072; e = E[4 * pa:4 * pa + 4]
        a(f"""ds_read_b128 {vr(e[0], 4)}, v{t0} offset:{off}
        ds_read_b64 {vr(e[1], 2)}, v{t1} offset:{off + 1024}
        ds_read_b32 v{e[1]+2}, v{t1} offset:{off + 1032}
        ds_read_b32 v{e[2]}, v{t2} offset:{off + 1536}
        ds_read_b32 v{e[2]+1}, v{t2} offset:{off + 1540}
        ds_read_b32 v{e[2]+2}, v{t2} offset:{off + 1792}
        ds_read_b32 v{e[2]+3}, v{t2} offset:{off + 1796}""")
    a(f"v_and_b32 v{E[3]}, 1, v{lane}\nv_cmp_eq_u32 vcc, 0, v{E[3]}\ns_waitcnt lgkmcnt(0)")
    for k, n in ((0, 4), (1, 3), (2, 4)):
        for i in range(n): a(f"v_add_f32 v{E[k]+i}, v{E[k]+i}, v{E[4+k]+i}")
    a(f"v_cndmask_b32 v{E[3]}, v{E[2]+1}, v{E[2]}, vcc\nv_cndmask_b32 v{E[3]+1}, v{E[2]+3}, v{E[2]+2}, vcc")
    put(0, E[0], E[0] + 1, E[0] + 2, E[0] + 3)
    put(1, E[1], E[1], E[1] + 1, E[1] + 2)
    put(2, E[2], E[2], E[3], E[2] + 1)
    put(3, E[2] + 2, E[2] + 2, E[3] + 1, E[2] + 3)
    a("s_branch K2_expd")
    a.label("K2_exp1")
    a(f"""v_add_u32 v{t1}, 1, v{lane}
    v_lshrrev_b32 v{t1}, 1, v{t1}
    v_and_b32 v{t0}, 1, v{lane}
    v_xor_b32 v{t0}, -1, v{t0}
    v_and_b32 v{t0}, v{t0}, v{t1}
    v_lshlrev_b32 v{t0}, 2, v{t0}
    v_lshlrev_b32 v{t1}, 2, v{t1}
    v_add_u32 v{t0}, s{st}, v{t0}
    v_add_u32 v{t1}, s{st}, v{t1}""")
    for pa in range(2):
        for b in range(4):
            off = pa * 3072 + 2048 + 128 * b
            a(f"ds_read_b32 v{E[2*pa]+b}, v{t0} offset:{off}\nds_read_b32 v{E[2*pa+1]+b}, v{t1} offset:{off}")
        if pa == 0: a("s_waitcnt lgkmcnt(4)")
    a("s_waitcnt lgkmcnt(0)")
    for k in range(2):
        for b in range(4): a(f"v_add_f32 v{E[k]+b}, v{E[k]+b}, v{E[2+k]+b}")
    for b in range(4): put(4 + b, E[0] + b, E[1] + b, E[1] + b, E[1] + b)
    a.label("K2_expd")
    a("s_waitcnt lgkmcnt(0)\ns_barrier")
    S()
    V.reset(m0_)
    vA = V.get(); vB = V.get(); acc = [V.get(4) for _ in range(8)]
    B = [V.get(4) for _ in range(16)]; A = [V.get(4) for _ in range(4)]
    a(f"""s_and_b32 s{st}, s{sw}, 2
    s_mul_i32 s{st}, s{st}, {KCP}
    s_add_u32 s{st}, s{st}, {L_KK + 224}
    v_and_b32 v{t0}, 3, v{lane}
    v_bfe_u32 v{t1}, v{lane}, 2, 2
    v_sub_u32 v{t0}, v{t0}, v{t1}
    v_lshlrev_b32 v{t1}, 3, v{g}
    v_sub_u32 v{t0}, v{t0}, v{t1}
    v_lshlrev_b32 v{t0}, 3, v{t0}
    v_add_u32 v{vA}, s{st}, v{t0}
    s_mul_i32 s{st}, s{sw}, 2304
    s_add_u32 s{st}, s{st}, {L_U + 8}
    v_lshlrev_b32 v{t0}, 3, v{idx}
    v_lshl_add_u32 v{t0}, v{g}, 4, v{t0}
    v_add_u32 v{vB}, s{st}, v{t0}""")
    for q in range(8):
        for i in range(4): a(f"v_mov_b32 v{acc[q]+i}, 0")
    a(f"s_mov_b32 s{sk}, 0")
    a.label("K2_cv")
    def rdA(s): return f"ds_read_b64_tr_b16 {vr(A[s & 3], 2)}, v{vA} offset:{256 * s + 32}\nds_read_b64_tr_b16 {vr(A[s & 3] + 2, 2)}, v{vA} offset:{256 * s}"
    def rdB(r): return f"ds_read_b64 {vr(B[r], 2)}, v{vB} offset:{64 * r}\nds_read_b64 {vr(B[r] + 2, 2)}, v{vB} offset:{64 * r + 8}"
    seq = [("A", 0)] + [("B", r) for r in range(1, 16, 2)] + [("A", 1)] + [("B", r) for r in range(0, 16, 2)] + [("A", s) for s in range(2, 16)]
    mm = [(s, q) for s in range(16) for q in range(s // 2, 8)]
    pos = {x: k for k, x in enumerate(seq)}
    issued = 0
    def issue_upto(k):
        nonlocal issued
        while issued <= min(k, len(seq) - 1):
            kind, i = seq[issued]; a(rdA(i) if kind == "A" else rdB(i)); issued += 1
    issue_upto(6)
    waited = -1
    for k, (s, q) in enumerate(mm):
        r = 2 * q - s + 1
        needk = max(pos[("A", s)], pos[("B", r)])
        if needk > waited:
            issue_upto(needk)
            a(f"s_waitcnt lgkmcnt({2 * (issued - 1 - needk)})"); waited = needk
        a(f"v_mfma_f32_16x16x32_bf16 {vr(acc[q], 4)}, {vr(A[s & 3], 4)}, {vr(B[r], 4)}, {vr(acc[q], 4)}")
        if issued < len(seq) and issued - 1 - waited < 7:
            kind, i = seq[issued]
            last_of = (q == 7)
            if kind == "B" or i - 4 < s or (i - 4 == s and last_of): issue_upto(issued)
    a(f"v_add_u32 v{vA}, {KCP}, v{vA}\nv_add_u32 v{vB}, 1152, v{vB}")
    a(f"s_add_u32 s{sk}, s{sk}, 1\ns_cmp_lt_u32 s{sk}, 2\ns_cbranch_scc1 K2_cv")
    S()
    a(f"""s_lshl_b32 s{st}, s{sw}, 13
    s_add_u32 s{st}, s{st}, {L_R}
    v_lshlrev_b32 v{t0}, 4, v{lane}
    v_add_u32 v{t1}, s{st}, v{t0}""")
    for q in range(8): a(f"ds_write_b128 v{t1}, {vr(acc[q], 4)} offset:{q * 1024}")
    a(f"""s_lshl_b32 s{st}, s{sw}, 11
    s_add_u32 s{st}, s{st}, {L_R}
    v_add_u32 v{t1}, s{st}, v{t0}
    v_subrev_u32 v{t2}, 16, v{lane}
    v_add_u32 v{t3}, 47, v{lane}
    v_cmp_gt_u32 vcc, 16, v{lane}
    v_cndmask_b32 v{t2}, v{t2}, v{t3}, vcc
    v_cmp_eq_u32 vcc, 0, v{lane}
    v_cndmask_b32 v{t2}, v{t2}, -1, vcc
    v_lshlrev_b32 v{t2}, 4, v{t2}
    s_add_u32 s{st}, s{st}, {8192 + 12}
    v_add_u32 v{t2}, s{st}, v{t2}
    s_waitcnt lgkmcnt(0)
    s_barrier""")
    RA = B
    for qq in range(2):
        for dd in range(2):
            k = 6 * qq + 3 * dd
            a(f"""ds_read_b128 {vr(RA[k], 4)}, v{t1} offset:{dd * 16384 + qq * 1024}
            ds_read_b128 {vr(RA[k+1], 4)}, v{t1} offset:{dd * 16384 + 8192 + qq * 1024}
            ds_read_b32 v{RA[k+2]}, v{t2} offset:{dd * 16384 + qq * 1024}""")
    a(f"""v_lshlrev_b32 v{t0}, 6, v{idx}
    v_lshl_add_u32 v{t0}, v{g}, 4, v{t0}
    s_lshl_b32 s{st}, s2, 13
    s_lshl_b32 s{st2}, s{sw}, 11
    s_add_u32 s{st}, s{st}, s{st2}
    s_add_u32 s{st}, s{st}, {WS_Y2}
    v_cmp_eq_u32 vcc, 0, v0
    s_waitcnt lgkmcnt(0)""")
    for dd in range(2): a(f"v_cndmask_b32 v{RA[3*dd+2]}, v{RA[3*dd+2]}, 0, vcc")
    for qq in range(2):
        for dd in range(2):
            k = 6 * qq + 3 * dd
            a(f"v_add_f32 v{RA[k]}, v{RA[k]}, v{RA[k+2]}")
            for v in range(1, 4): a(f"v_add_f32 v{RA[k]+v}, v{RA[k]+v}, v{RA[k+1]+v-1}")
        k = 6 * qq
        for v in range(4): a(f"v_cvt_pk_bf16_f32 v{A[qq]+v}, v{RA[k]+v}, v{RA[k+3]+v}")
        a(f"buffer_store_dwordx4 {vr(A[qq], 4)}, v{t0}, s[{WS}:{WS+3}], s{st} offen offset:{qq * 1024}")
    S()
    S.flush(WS, sw, t1, 4)
    a.label("K2_end")
    return a, V.hi, L_R + 32768

def k3():
    a = Asm(); V = Regs("v", 1, 256)
    X, WD, DS, OUT, WS = 4, 8, 12, 16, 20
    sw, srb, scb, st, st2, swd, sh0, sh1, sl = 24, 25, 26, 27, 28, 29, 30, 31, 32
    S = Stamps(a, 40, 2)
    S()
    D = 8
    a("s_cmp_ge_u32 s2, 256\ns_cbranch_scc1 K3_end")
    post = srd(a, X, 0, 2097152) + srd(a, WD, 96, 1835008) + srd(a, DS, 64, 1024) + srd(a, OUT, 112, 2097152) + srd(a, WS, 128, WS_SIZE)
    lane = V.get(); t0 = V.get(); t1 = V.get(); t2 = V.get()
    a(f"v_lshrrev_b32 v{t0}, 6, v0\nv_and_b32 v{lane}, 63, v0\nv_readfirstlane_b32 s{sw}, v{t0}")
    a("\n".join(post))
    vod = V.get(); v16 = V.get(); vaw = V.get(2)
    a(f"""s_and_b32 s{srb}, s2, 7
    s_lshl_b32 s{srb}, s{srb}, 2
    s_lshr_b32 s{st}, s2, 6
    s_add_u32 s{srb}, s{srb}, s{st}
    s_bfe_u32 s{scb}, s2, 0x30003
    s_mul_i32 s{swd}, s{sw}, {448 * 1024}
    s_lshl_b32 s{st}, s{scb}, 7
    s_add_u32 s{swd}, s{swd}, s{st}
    s_mul_i32 s{sh0}, s{srb}, {224 * 1024}
    s_mul_i32 s{st}, s{sw}, {28 * 1024}
    s_add_u32 s{sh0}, s{sh0}, s{st}
    s_add_u32 s{sh1}, s{sh0}, {112 * 1024}
    s_mul_i32 s{sl}, s{sw}, {D * 2048}
    v_lshlrev_b32 v{v16}, 4, v{lane}
    v_bfe_u32 v{t0}, v{lane}, 4, 1
    v_lshlrev_b32 v{t0}, 2, v{t0}
    v_xor_b32 v{t0}, v{t0}, v{lane}
    v_and_b32 v{t0}, 7, v{t0}
    v_lshlrev_b32 v{t0}, 4, v{t0}
    v_lshrrev_b32 v{vod}, 3, v{lane}
    v_lshl_add_u32 v{vod}, v{vod}, 10, v{t0}
    s_waitcnt lgkmcnt(0)""")
    H = [[V.get(4), V.get(4)] for _ in range(D)]
    nv = [0]
    def issue(n):
        sl_ = n % D
        a(f"s_add_u32 m0, s{sl}, {sl_ * 2048}\ns_add_u32 s{st}, s{swd}, {n * 16384}")
        a(f"buffer_load_dwordx4 v{vod}, s[{WD}:{WD+3}], s{st} offen lds")
        a(f"s_add_u32 m0, s{sl}, {sl_ * 2048 + 1024}\ns_add_u32 s{st}, s{swd}, {n * 16384 + 8192}")
        a(f"buffer_load_dwordx4 v{vod}, s[{WD}:{WD+3}], s{st} offen lds")
        a(f"buffer_load_dwordx4 {vr(H[sl_][0], 4)}, v{v16}, s[{WS}:{WS+3}], s{sh0} offen offset:{(n & 3) * 1024}")
        a(f"buffer_load_dwordx4 {vr(H[sl_][1], 4)}, v{v16}, s[{WS}:{WS+3}], s{sh1} offen offset:{(n & 3) * 1024}")
        if n & 3 == 3: a(f"s_add_u32 s{sh0}, s{sh0}, 4096\ns_add_u32 s{sh1}, s{sh1}, 4096")
        nv[0] = n + 1
    for n in range(D): issue(n)
    a(f"""v_bfe_u32 v{t0}, v{lane}, 2, 2
    v_lshrrev_b32 v{t1}, 5, v{lane}
    v_lshl_add_u32 v{t1}, v{t1}, 2, v{t0}
    v_lshlrev_b32 v{t1}, 7, v{t1}
    v_lshrrev_b32 v{t0}, 1, v{t0}
    v_lshl_add_u32 v{t1}, v{t0}, 6, v{t1}
    v_bfe_u32 v{t0}, v{lane}, 4, 1
    v_lshl_add_u32 v{t1}, v{t0}, 5, v{t1}
    v_and_b32 v{t0}, 3, v{lane}
    v_lshl_add_u32 v{t1}, v{t0}, 3, v{t1}
    v_add_u32 v{vaw}, s{sl}, v{t1}
    v_xor_b32 v{vaw+1}, 64, v{vaw}""")
    acc = [V.get(16, 4) for _ in range(4)]
    W = [[V.get(4), V.get(4)] for _ in range(2)]
    def rdw(n):
        o = (n % D) * 2048
        for j in range(2):
            a(f"ds_read_b64_tr_b16 {vr(W[n & 1][j], 2)}, v{vaw + j} offset:{o}\nds_read_b64_tr_b16 {vr(W[n & 1][j] + 2, 2)}, v{vaw + j} offset:{o + 1024}")
    S()
    a(f"s_waitcnt vmcnt({4 * (nv[0] - 1)})"); rdw(0)
    S()
    for n in range(28):
        if n + 1 < 28:
            a(f"s_waitcnt vmcnt({4 * (nv[0] - n - 2)})")
            rdw(n + 1); a("s_waitcnt lgkmcnt(4)")
        else: a("s_waitcnt lgkmcnt(0)")
        for j in range(2):
            for tt in range(2):
                ac = vr(acc[2 * j + tt], 16)
                a(f"v_mfma_f32_32x32x16_bf16 {ac}, {vr(W[n & 1][j], 4)}, {vr(H[n % D][tt], 4)}, {ac if n else 0}")
        if n + D < 28: issue(n + D)
    S()
    Y = V.get(8, 4); U = V.get(8, 4); DK = V.get(8, 4); G = V.get(); vy = V.get(); vx = V.get(); vd = V.get()
    a(f"""s_and_b32 s{st}, s{sw}, 1
    s_lshl_b32 s{st}, s{st}, 5
    s_lshl_b32 s{st2}, s{srb}, 6
    s_add_u32 s{st}, s{st}, s{st2}
    v_and_b32 v{t0}, 31, v{lane}
    v_add_u32 v{t0}, s{st}, v{t0}
    v_lshrrev_b32 v{t1}, 5, v{lane}
    s_lshr_b32 s{st}, s{sw}, 1
    s_lshl_b32 s{st}, s{st}, 6
    s_lshl_b32 s{st2}, s{scb}, 7
    s_add_u32 s{st}, s{st}, s{st2}
    v_lshlrev_b32 v{vd}, 3, v{t1}
    v_add_u32 v{vd}, s{st}, v{vd}
    v_lshl_add_u32 v{vx}, v{t0}, 10, v{vd}
    v_lshlrev_b32 v{t0}, 2, v{t0}
    v_lshl_add_u32 v{vy}, v{vd}, 11, v{t0}
    s_mov_b32 s{st}, {WS_GATE}
    buffer_load_dword v{G}, v{t0}, s[{WS}:{WS+3}], s{st} offen""")
    for blk in range(4):
        a(f"buffer_load_dwordx2 {vr(U + 2 * blk, 2)}, v{vx}, s[{X}:{X+3}], 0 offen offset:{16 * blk}")
        a(f"buffer_load_dwordx2 {vr(DK + 2 * blk, 2)}, v{vd}, s[{DS}:{DS+3}], 0 offen offset:{16 * blk}")
        for i in range(2):
            a(f"s_mov_b32 s{st}, {WS_Y2 + (4 * blk + i) * 8192}\nbuffer_load_dword v{Y + 2 * blk + i}, v{vy}, s[{WS}:{WS+3}], s{st} offen")
    a("s_barrier")
    a(f"s_lshl_b32 s{st}, s{sw}, 14\nv_add_u32 v{t1}, s{st}, v{v16}\ns_lshl_b32 s{st}, s{sw}, 12\nv_add_u32 v{t2}, s{st}, v{v16}")
    for tl in range(4):
        for qd in range(4): a(f"ds_write_b128 v{t1}, {vr(acc[tl] + 4 * qd, 4)} offset:{tl * 4096 + qd * 1024}")
    a("s_waitcnt lgkmcnt(0)\ns_barrier")
    for src in range(4):
        for qd in range(4): a(f"ds_read_b128 {vr(acc[src] + 4 * qd, 4)}, v{t2} offset:{src * 16384 + qd * 1024}")
        if src == 1: a("s_waitcnt lgkmcnt(4)")
    T1 = H[0][0]; ta = H[4][0]; tb = ta + 1; tc = ta + 2; td = ta + 3; om = V.get()
    a(f"s_waitcnt vmcnt(0)\nv_sub_f32 v{om}, 1.0, v{G}\nv_cvt_pk_bf16_f32 v{om}, v{om}, v{om}\nv_lshlrev_b32 v{om}, 16, v{om}")
    for p in range(8):
        a(f"""v_lshlrev_b32 v{ta}, 16, v{U+p}
        v_and_b32 v{tb}, 0xffff0000, v{U+p}
        v_lshlrev_b32 v{tc}, 16, v{DK+p}
        v_and_b32 v{td}, 0xffff0000, v{DK+p}
        v_mul_f32 v{ta}, v{ta}, v{tc}
        v_mul_f32 v{tb}, v{tb}, v{td}
        v_cvt_pk_bf16_f32 v{ta}, v{ta}, v{tb}
        v_lshlrev_b32 v{tc}, 16, v{Y+p}
        v_and_b32 v{td}, 0xffff0000, v{Y+p}
        v_and_b32 v{tb}, 0xffff0000, v{ta}
        v_lshlrev_b32 v{ta}, 16, v{ta}
        v_add_f32 v{ta}, v{ta}, v{tc}
        v_add_f32 v{tb}, v{tb}, v{td}
        v_cvt_pk_bf16_f32 v{ta}, v{ta}, v{tb}
        v_and_b32 v{tb}, 0xffff0000, v{ta}
        v_lshlrev_b32 v{ta}, 16, v{ta}
        v_mul_f32 v{T1+2*p}, v{G}, v{ta}
        v_mul_f32 v{T1+2*p+1}, v{G}, v{tb}""")
    a("s_waitcnt lgkmcnt(0)")
    for i in range(16):
        a(f"v_add_f32 v{acc[0]+i}, v{acc[0]+i}, v{acc[1]+i}\nv_add_f32 v{acc[2]+i}, v{acc[2]+i}, v{acc[3]+i}")
    for i in range(16): a(f"v_add_f32 v{acc[0]+i}, v{acc[0]+i}, v{acc[2]+i}")
    for i in range(16): a(f"v_fma_f32 v{acc[0]+i}, v{acc[0]+i}, v{om}, v{T1+i}")
    O = acc[1]
    for p in range(8): a(f"v_cvt_pk_bf16_f32 v{O+p}, v{acc[0]+2*p}, v{acc[0]+2*p+1}")
    a(f"v_lshrrev_b32 v{t1}, 5, v{lane}\nv_lshl_add_u32 v{vx}, v{t1}, 3, v{vx}")
    for k in (0, 2):
        a(f"v_permlane32_swap_b32 v{O+2*k}, v{O+2*k+2}\nv_permlane32_swap_b32 v{O+2*k+1}, v{O+2*k+3}")
        a(f"buffer_store_dwordx4 {vr(O + 2 * k, 4)}, v{vx}, s[{OUT}:{OUT+3}], 0 offen offset:{16 * k}")
    S()
    S.flush(WS, sw, t0, 4)
    a.label("K3_end")
    return a, V.hi, 65536

def main():
    ks = [("gm_gemm1_kernel", k1(), 512), ("gm_ssm_kernel", k2(), 256), ("gm_gemm2_kernel", k3(), 256)]
    s = "; gated mix of an S4 long-convolution branch and a sigmoid-GLU branch (generated by gen/gen1.py)\n"
    for nm, (a, hv, lds), blk in ks:
        s += f"; @launch kernel={nm} grid=(256,1,1) block=({blk},1,1) lds={lds}\n"
    s += '.amdgcn_target "amdgcn-amd-amdhsa--gfx950"\n.text\n'
    for nm, (a, hv, lds), blk in ks:
        rep = []
        body = a.finish(rep)
        print(nm, "vgprs", hv, "nops", len(rep), file=sys.stderr)
        for r in rep: print("   ", r, file=sys.stderr)
        s += f".globl {nm}\n.p2align 8\n.type {nm},@function\n{nm}:\n{body}\n    s_endpgm\n"
    s += '.section .rodata,"a"\n'
    for nm, (a, hv, lds), blk in ks:
        v = (hv + 7) // 8 * 8
        s += f""".p2align 6
.amdhsa_kernel {nm}
  .amdhsa_next_free_vgpr {v}
  .amdhsa_next_free_sgpr 96
  .amdhsa_accum_offset {v}
  .amdhsa_group_segment_fixed_size 0
  .amdhsa_kernarg_size 136
  .amdhsa_user_sgpr_count 2
  .amdhsa_user_sgpr_kernarg_segment_ptr 1
  .amdhsa_system_sgpr_workgroup_id_x 1
.end_amdhsa_kernel
"""
    open(sys.argv[1], "w").write(s)
main()
```

```python
import sys, os
from asmlib import *

NAME = "gated_mix__ssm_conv_s4__glu_gated_glu__prompt"
WS_H, WS_UT, WS_Y2, WS_GATE, WS_FH, WS_FU, WS_STAMP = 0, 8 << 20, 10 << 20, 14 << 20, 15 << 20, (15 << 20) + (1 << 19), 16 << 20
WS_SIZE = 24 << 20
LOG2E = 0x3FB8AA3B; NLOG2E = 0xBFB8AA3B; INV2PI = 0x3E22F983
OPT = dict(diag=0, rot=1, prio=1, pf=3, sleep=2, tick=0, pk=1, krot=1, k0=2, k1=11, ystep=20, sig2=110, p2=0, lmp=1, hd=10, auxsleep=8, fin=0, cprio2=2, lsleep=1, pf0=5, dgap=4, pollat=14, iop=1)
for x in sys.argv[2:]:
    k, _, v = x.partition("="); assert k in OPT, k; OPT[k] = int(v or 1)
DIAG = OPT["diag"]
SPIN = 1 << 20

XR = 65536
L_KC, L_KK, L_U, L_MISC = 114688, 132096, 148736, 157952
TBS = 4352
L_R = 98304
KCP = 4160
LDS_BYTES = L_MISC + 64
def xslot(j): return XR + ((j + 1) % 3) * 16384
def wslot(n): return (n % 12) * 8192

a = Asm()
KA, KB = 36, 52
P_X, P_PRM, P_LDT = 36, 38, 50
P_DS, P_WG, P_WU, P_WD, P_GW, P_OUT, P_DBG = 52, 56, 58, 60, 62, 64, 66
X, WG, WU, WS, WD, OUT = 4, 8, 12, 16, 20, 24
sw, smb, sfb, saux, srb, scb, st, st2 = 28, 29, 30, 31, 32, 33, 34, 35
S_ = Regs("s", 68, 100)
stok = S_.get(); sa = S_.get(); sb = S_.get(); sc = S_.get(); sd = S_.get(); se = S_.get(); sf = S_.get(); sspin = S_.get()
STB = S_.get(2); sc2 = S_.get(2)
SG = [S_.get() for _ in range(7)]; SH = [S_.get() for _ in range(7)]

class Stamps:
    def __init__(self, v): self.v, self.n = v, 0
    def __call__(self):
        if DIAG:
            a(f"s_memtime s[{STB}:{STB+1}]\ns_waitcnt lgkmcnt(0)\nv_writelane_b32 v{self.v}, s{STB}, {self.n}"); self.n += 1
    def flush(self, vt):
        if not DIAG: return
        a(f"""s_memrealtime s[{STB}:{STB+1}]
        s_waitcnt lgkmcnt(0)
        v_writelane_b32 v{self.v}, s{STB}, 31
        s_lshl_b32 s3, s2, 3
        s_add_u32 s3, s3, s{sw}
        s_lshl_b32 s3, s3, 7
        s_add_u32 s3, s3, {WS_STAMP}
        v_and_b32 v{vt}, 63, v0
        v_lshlrev_b32 v{vt}, 2, v{vt}
        s_mov_b64 exec, 0xffffffff
        buffer_store_dword v{self.v}, v{vt}, s[{WS}:{WS+3}], s3 offen
        s_mov_b64 exec, -1""")

def mksrd(s, p, size): a(f"s_mov_b32 s{s}, s{p}\ns_mov_b32 s{s+1}, s{p+1}\ns_mov_b32 s{s+2}, {size}\ns_mov_b32 s{s+3}, 0x20000")
uid = [0]
def newl(p):
    uid[0] += 1; return f"{p}{uid[0]}"
def poll_flags(vdst, voff, soff, nlanes, first_issued=False, ssleep=None):
    L = newl("Lpoll"); mask = (1 << nlanes) - 1
    a(f"s_mov_b32 s{sspin}, 0\ns_mov_b64 exec, {mask:#x}" if nlanes < 32 else f"s_mov_b32 s{sspin}, 0\ns_mov_b32 exec_hi, 0")
    if first_issued: a(f"s_branch {L}_chk")
    a.label(L)
    a(f"buffer_load_dword v{vdst}, v{voff}, s[{WS}:{WS+3}], s{soff} offen sc1\ns_waitcnt vmcnt(0)")
    a.label(f"{L}_chk")
    a(f"""v_cmp_ne_u32 vcc, s{stok}, v{vdst}
    s_add_u32 s{sspin}, s{sspin}, 1
    s_cbranch_vccz {L}_ok
    s_sleep {OPT["sleep"]}""")
    if ssleep: a(f"s_cmp_eq_u32 s{saux}, 0\ns_cbranch_scc1 {L}_ns\ns_sleep {ssleep}\n{L}_ns:")
    a(f"""s_cmp_lt_u32 s{sspin}, {SPIN}
    s_cbranch_scc1 {L}""")
    a.label(f"{L}_ok")
    a("s_mov_b64 exec, -1")
def lds_wait(vaddr, vtmp, off, target, first_issued=False):
    L = newl("Llw")
    a(f"s_mov_b32 s{sspin}, 0")
    if first_issued: a(f"s_branch {L}_chk")
    a.label(L)
    a(f"ds_read_b32 v{vtmp}, v{vaddr} offset:{off}")
    a.label(f"{L}_chk")
    a(f"""s_add_u32 s{sspin}, s{sspin}, 1
    s_waitcnt lgkmcnt(0)
    v_readfirstlane_b32 s{st}, v{vtmp}
    s_cmp_ge_u32 s{st}, {target}
    s_cbranch_scc1 {L}_ok
    s_sleep {OPT["lsleep"]}
    s_cmp_lt_u32 s{sspin}, {SPIN}
    s_cbranch_scc1 {L}""")
    a.label(f"{L}_ok")
def lds_signal(vaddr, vone, off):
    a(f"s_mov_b64 exec, 1\nds_add_u32 v{vaddr}, v{vone} offset:{off}\ns_mov_b64 exec, -1")
def merge(main, ins, lead=0):
    out = []; n = len(ins); m = len(main)
    k = 0
    for i, x in enumerate(main):
        while k < n and k * m <= (i - lead) * n: out.append(ins[k]); k += 1
        out.append(x)
    out += ins[k:]
    return out
def wd_groups(swave, with_h):
    a(f"s_mul_i32 s{st}, s{swave}, {448 * 1024}\ns_lshl_b32 s{st2}, s{scb}, 7\ns_add_u32 s{st}, s{st}, s{st2}")
    if OPT["rot"]: a(f"s_cmp_eq_u32 s{scb}, 7\ns_cselect_b32 s{st2}, 0, s{scb}\ns_lshl_b32 s{st2}, s{st2}, 12")
    else: a(f"s_mov_b32 s{st2}, 0")
    if with_h: a(f"s_mul_i32 s{sc2}, s{srb}, {224 * 1024}\ns_mul_i32 s{sc2+1}, s{swave}, {28 * 1024}\ns_add_u32 s{sc2}, s{sc2}, s{sc2+1}")
    for g_ in range(7):
        a(f"s_lshl_b32 s{SG[g_]}, s{st2}, 4\ns_add_u32 s{SG[g_]}, s{SG[g_]}, s{st}")
        if with_h: a(f"s_add_u32 s{SH[g_]}, s{sc2}, s{st2}")
        if g_ < 6: a(f"s_add_u32 s{st2}, s{st2}, 4096\ns_cmp_eq_u32 s{st2}, {7 * 4096}\ns_cselect_b32 s{st2}, 0, s{st2}")
def wd_dma1(n, h, slds, voff):
    return (f"s_add_u32 m0, s{slds}, {wslot(n) + h * 1024}\ns_add_u32 s{st}, s{SG[n >> 2]}, {(n & 3) * 16384 + h * 8192}\n"
            f"buffer_load_dwordx4 v{voff}, s[{WD}:{WD+3}], s{st} offen lds")
def wd_voff(v):
    a(f"""v_bfe_u32 v{t0}, v{lane}, 4, 1
    v_lshlrev_b32 v{t0}, 2, v{t0}
    v_xor_b32 v{t0}, v{t0}, v{lane}
    v_and_b32 v{t0}, 7, v{t0}
    v_lshlrev_b32 v{t0}, 4, v{t0}
    v_lshrrev_b32 v{v}, 3, v{lane}
    v_lshl_add_u32 v{v}, v{v}, 10, v{t0}""")

lane, t0, t1, t2, t3, vstamp, vmisc, vone = 1, 2, 3, 4, 5, 6, 7, 8
VBASE = 9
S = Stamps(vstamp)
if DIAG:
    a(f"s_memrealtime s[{STB}:{STB+1}]\ns_waitcnt lgkmcnt(0)\nv_mov_b32 v{vstamp}, -1\nv_writelane_b32 v{vstamp}, s{STB}, 30")
S()
a(f"""s_cmp_ge_u32 s2, 256
s_cbranch_scc1 L_end
s_load_dwordx16 s[{KA}:{KA+15}], s[0:1], 0
s_load_dwordx16 s[{KB}:{KB+15}], s[0:1], 64
s_load_dwordx2 s[{WS}:{WS+1}], s[0:1], 128
v_lshrrev_b32 v{t0}, 6, v0
v_and_b32 v{lane}, 63, v0
v_readfirstlane_b32 s{sw}, v{t0}
s_mov_b32 s{WS+2}, {WS_SIZE}
s_mov_b32 s{WS+3}, 0x20000
s_and_b32 s{st}, s2, 7
s_lshr_b32 s{st2}, s2, 3
s_cmp_ge_u32 s{st2}, 28
s_cselect_b32 s{saux}, 1, 0
s_mul_i32 s{smb}, s{st2}, 37
s_lshr_b32 s{smb}, s{smb}, 8
s_mul_i32 s{sfb}, s{smb}, 7
s_sub_u32 s{sfb}, s{st2}, s{sfb}
s_lshr_b32 s{sa}, s{st}, 1
s_lshl_b32 s{sa}, s{sa}, 2
s_add_u32 s{smb}, s{smb}, s{sa}
s_and_b32 s{sa}, s{st}, 1
s_mul_i32 s{sa}, s{sa}, 7
s_add_u32 s{sfb}, s{sfb}, s{sa}
s_lshl_b32 s{srb}, s{st}, 2
s_lshr_b32 s{sa}, s2, 6
s_add_u32 s{srb}, s{srb}, s{sa}
s_and_b32 s{scb}, s{st2}, 7
v_mov_b32 v{vmisc}, {L_MISC}
v_mov_b32 v{vone}, 1
s_cmp_ge_u32 s{sw}, 4
s_cbranch_scc1 L_role""")
nst_common = S.n

V = Regs("v", VBASE, 256)
if OPT["prio"]: a("s_setprio 2")
vxb = [V.get() for _ in range(4)]; vax = [V.get() for _ in range(4)]; v16 = V.get(); vaw = V.get(2); vd = V.get(4)
vod = V.get(); vh = V.get(2)
WR = [V.get(8, 4) for _ in range(6)]
F = [V.get(24, 4) for _ in range(2)]
acc = [V.get(16, 4) for _ in range(8)]
sl = sd
a(f"""v_bfe_u32 v{t0}, v{lane}, 2, 2
v_lshrrev_b32 v{t1}, 5, v{lane}
v_lshl_add_u32 v{t1}, v{t1}, 2, v{t0}
v_lshlrev_b32 v{t1}, 7, v{t1}
v_lshrrev_b32 v{t0}, 1, v{t0}
s_lshr_b32 s{st}, s{sw}, 1
v_xor_b32 v{t0}, s{st}, v{t0}
v_lshl_add_u32 v{t1}, v{t0}, 6, v{t1}
v_bfe_u32 v{t0}, v{lane}, 4, 1
v_lshl_add_u32 v{t1}, v{t0}, 5, v{t1}
v_and_b32 v{t0}, 3, v{lane}
v_lshl_add_u32 v{t1}, v{t0}, 3, v{t1}
s_lshl_b32 s{sl}, s{sw}, 11
v_add_u32 v{vd}, s{sl}, v{t1}
v_xor_b32 v{vd+1}, 64, v{vd}
v_add_u32 v{vd+2}, 0x10000, v{vd}
v_add_u32 v{vd+3}, 0x10000, v{vd+1}
v_lshlrev_b32 v{v16}, 4, v{lane}
s_and_b32 s{st}, s{sw}, 1
s_mul_i32 s{st}, s{st}, {112 * 1024}
v_add_u32 v{vh}, s{st}, v{v16}
s_sub_u32 s{st}, {112 * 1024}, s{st}
v_add_u32 v{vh+1}, s{st}, v{v16}""")
a(f"""v_mov_b32 v{t0}, 0
v_lshl_add_u32 v{t1}, v{lane}, 2, v{vmisc}
s_mov_b64 exec, 0xffff
ds_write_b32 v{t1}, v{t0}
s_mov_b64 exec, -1""")
wd_voff(vod)
wd_groups(sw, True)
a("s_waitcnt lgkmcnt(0)")
mksrd(WD, P_WD, 1835008); mksrd(X, P_X, 2097152); mksrd(OUT, P_OUT, 2097152)
sfh = S_.get(); vfl = V.get()
a(f"""s_mul_i32 s{sfh}, s{srb}, 28
s_mul_i32 s{st}, s{sw}, 7
s_add_u32 s{sfh}, s{sfh}, s{st}
s_lshl_b32 s{sfh}, s{sfh}, 7
s_add_u32 s{sfh}, s{sfh}, {WS_FH}
v_lshlrev_b32 v{vfl}, 7, v{lane}
s_mov_b64 exec, 0x7f
buffer_load_dword v{t3}, v{vfl}, s[{WS}:{WS+3}], s{sfh} offen sc1
s_mov_b64 exec, -1""")
vx = V.get(); vy = V.get(); vg = V.get()
a(f"""s_and_b32 s{st}, s{sw}, 1
s_lshl_b32 s{st}, s{st}, 5
s_lshl_b32 s{st2}, s{srb}, 6
s_add_u32 s{st}, s{st}, s{st2}
v_and_b32 v{t0}, 31, v{lane}
v_add_u32 v{t0}, s{st}, v{t0}
v_lshrrev_b32 v{t1}, 5, v{lane}
s_lshr_b32 s{st}, s{sw}, 1
s_lshl_b32 s{st}, s{st}, 6
s_lshl_b32 s{st2}, s{scb}, 7
s_add_u32 s{st}, s{st}, s{st2}
v_lshlrev_b32 v{t2}, 3, v{t1}
v_add_u32 v{t2}, s{st}, v{t2}
v_lshl_add_u32 v{vx}, v{t0}, 10, v{t2}
v_lshlrev_b32 v{vg}, 3, v{t0}
v_lshrrev_b32 v{t1}, 8, v{t0}
v_lshlrev_b32 v{vy}, 11, v{t1}
v_bfe_u32 v{t1}, v{t0}, 1, 1
v_lshl_add_u32 v{vy}, v{t1}, 10, v{vy}
v_bfe_u32 v{t1}, v{t0}, 2, 6
v_lshl_add_u32 v{vy}, v{t1}, 4, v{vy}
v_and_b32 v{t1}, 1, v{t0}
v_lshl_add_u32 v{vy}, v{t1}, 3, v{vy}
v_lshl_add_u32 v{vy}, v{t2}, 12, v{vy}
""")
U, DK = WR[0], WR[1]
vdd = WR[2]
a(f"v_mov_b32 v{vdd}, v{t2}")
ud_loads = []
for blk in range(4):
    ud_loads.append(f"buffer_load_dwordx2 {vr(U + 2 * blk, 2)}, v{vx}, s[{X}:{X+3}], 0 offen offset:{16 * blk}")
    ud_loads.append(f"global_load_dwordx2 {vr(DK + 2 * blk, 2)}, v{vdd}, s[{P_DS}:{P_DS+1}] offset:{16 * blk}")
a(f"s_cmp_lg_u32 s{saux}, 0\ns_cbranch_scc1 C_aux")
a(f"""s_add_u32 s{st}, s2, s{sw}
s_cmp_lg_u32 s{st}, 0
s_cbranch_scc1 C_notok
s_memrealtime s[{STB}:{STB+1}]
s_waitcnt lgkmcnt(0)
s_mul_i32 s{st}, s{STB}, 0x9e3779b1
s_or_b32 s{st}, s{st}, 1
v_mov_b32 v{t2}, s{st}
v_mov_b32 v{t1}, 0
s_mov_b64 exec, 1
global_store_dword v{t1}, v{t2}, s[{P_DBG}:{P_DBG+1}] sc1
s_mov_b64 exec, -1""")
a.label("C_notok")
a(f"""v_and_b32 v{t0}, 31, v{lane}
v_bfe_u32 v{t1}, v{lane}, 1, 3
v_lshrrev_b32 v{t2}, 5, v{lane}
v_xor_b32 v{t1}, v{t1}, v{t2}
v_lshlrev_b32 v{t1}, 4, v{t1}
v_lshl_add_u32 v{t1}, v{t0}, 7, v{t1}
s_and_b32 s{st}, s{sw}, 1
s_lshl_b32 s{st}, s{st}, 13
v_add_u32 v{vxb[0]}, s{st}, v{t1}
v_xor_b32 v{vxb[1]}, 32, v{vxb[0]}
v_xor_b32 v{vxb[2]}, 64, v{vxb[0]}
v_xor_b32 v{vxb[3]}, 96, v{vxb[0]}
v_bfe_u32 v{t0}, v{lane}, 2, 2
s_and_b32 s{st}, s{sw}, 2
v_xor_b32 v{t1}, s{st}, v{t0}
v_lshlrev_b32 v{t1}, 6, v{t1}
v_lshl_add_u32 v{t0}, v{t2}, 3, v{t0}
v_lshl_add_u32 v{vaw}, v{t0}, 8, v{t1}
v_bfe_u32 v{t0}, v{lane}, 4, 1
v_lshl_add_u32 v{vaw}, v{t0}, 5, v{vaw}
v_and_b32 v{t0}, 3, v{lane}
v_lshl_add_u32 v{vaw}, v{t0}, 3, v{vaw}
v_xor_b32 v{vaw+1}, 64, v{vaw}
s_mov_b32 s{sa}, {xslot(0)}
s_mov_b32 s{sb}, 0""")
for s in range(4): a(f"v_add_u32 v{vax[s]}, s{sa}, v{vxb[s]}")
for r in range(acc[0], acc[7] + 16, 2): a(f"v_pk_mul_f32 {vr(r, 2)}, 0, 0") if False else a(f"v_mov_b64 {vr(r, 2)}, 0")
a(f"""s_and_b32 s{st}, s{sw}, 1
s_lshl_b32 s{st}, s{st}, 1
s_lshl_b32 s{st2}, s{smb}, 2
s_add_u32 s{st}, s{st}, s{st2}
s_mul_i32 s{st}, s{st}, 112
s_lshl_b32 s{st2}, s{sfb}, 3
s_add_u32 s{st}, s{st}, s{st2}
s_and_b32 s{st2}, s{sw}, 2
s_lshl_b32 s{st2}, s{st2}, 1
s_add_u32 s{st}, s{st}, s{st2}
s_lshl_b32 s{se}, s{st}, 10
s_add_u32 s{sf}, s{se}, {112 * 1024}
s_lshr_b32 s{sc}, s{sw}, 1
s_lshl_b32 s{st2}, s{sfb}, 1
s_add_u32 s{sc}, s{sc}, s{st2}
s_and_b32 s{st}, s{sw}, 1
s_lshl_b32 s{st2}, s{smb}, 1
s_add_u32 s{st}, s{st}, s{st2}
s_mul_i32 s{st}, s{st}, 28
s_add_u32 s{sc}, s{sc}, s{st}
s_lshl_b32 s{sc}, s{sc}, 7
s_add_u32 s{sc}, s{sc}, {WS_FH}
s_mov_b32 s{sc2}, {NLOG2E}
s_mov_b32 s{sc2+1}, {NLOG2E}""")
def fx(n, tt): return F[n & 1] + 4 * tt
def fw(n, jj, m): return F[n & 1] + 8 + 8 * jj + 4 * m
def reads(s):
    wo = (s >> 1) * 16384 + (s & 1) * 4096
    r = []
    def w(jj, m):
        r.append(f"ds_read_b64_tr_b16 {vr(fw(s, jj, m), 2)}, v{vaw + jj} offset:{wo + m * 8192}")
        r.append(f"ds_read_b64_tr_b16 {vr(fw(s, jj, m) + 2, 2)}, v{vaw + jj} offset:{wo + m * 8192 + 1024}")
    r.append(f"ds_read_b128 {vr(fx(s, 0), 4)}, v{vax[s]}")
    w(0, 0); w(0, 1); w(1, 0); w(1, 1)
    r.append(f"ds_read_b128 {vr(fx(s, 1), 4)}, v{vax[s]} offset:4096")
    return r
def mfmas(s):
    r = []
    for tt in range(2):
        for jj in range(2):
            for m in range(2):
                ac = vr(acc[(tt * 2 + jj) * 2 + m], 16)
                r.append(f"v_mfma_f32_32x32x16_bf16 {ac}, {vr(fw(s, jj, m), 4)}, {vr(fx(s, tt), 4)}, {ac}")
    return r
def wd_read(dst, n):
    b = wslot(n); ad = vd + (2 if b >= 65536 else 0); o = b & 0xffff
    return [f"ds_read_b64_tr_b16 {vr(dst + 4 * j + 2 * h, 2)}, v{ad + j} offset:{o + 1024 * h}" for j in range(2) for h in range(2)]
S()
a("s_barrier")
S()
a("\n".join(reads(0)))
def body(last):
    for s in range(4):
        m = mfmas(s)
        a("s_waitcnt lgkmcnt(0)")
        pre = []; rd = []
        if s == 3:
            if not last:
                pre = [f"s_add_u32 s{sa}, s{sa}, 16384", f"s_cmp_eq_u32 s{sa}, {XR + 49152}", f"s_cselect_b32 s{sa}, {XR}, s{sa}",
                       f"v_xor_b32 v{vaw}, 0x8000, v{vaw}", f"v_xor_b32 v{vaw+1}, 0x8000, v{vaw+1}", f"v_add_u32 v{vax[0]}, s{sa}, v{vxb[0]}"]
                rd = reads(0)
        else: rd = reads(s + 1)
        a(m[0])
        a("\n".join(pre))
        if s & 1 and not last: a("s_barrier")
        if s == 3 and last:
            lds_signal(vmisc, vone, 20)
            a(f"ds_read_b32 v{t3}, v{vmisc}")
        if s == 0 and last: a("s_waitcnt vmcnt(0)")
        k = 0
        for i in range(1, 8):
            chunk = rd[k:k + 2]; k += 2
            if chunk: a("\n".join(chunk))
            if last and i in (6, 7): a(ud_loads[2 * s + i - 6])
            a(m[i])
        assert k >= len(rd)
        if s == 3 and not last:
            for q in range(1, 4): a(f"v_add_u32 v{vax[q]}, s{sa}, v{vxb[q]}")
a.label("C_loop")
body(False)
a(f"s_add_u32 s{sb}, s{sb}, 1\ns_cmp_lt_u32 s{sb}, 7\ns_cbranch_scc1 C_loop")
body(True)
S()
WR += [F[0], F[0] + 8, F[0] + 16, F[1], F[1] + 8, F[1] + 16]
WT = [WR[0], WR[1]]
def epi_group(k):
    tt, jj, hf = k >> 2, (k >> 1) & 1, k & 1
    g = acc[(tt * 2 + jj) * 2] + 8 * hf; u = acc[(tt * 2 + jj) * 2 + 1] + 8 * hf
    r = []
    if OPT["pk"]:
        r += [f"v_pk_mul_f32 {vr(g+i, 2)}, {vr(g+i, 2)}, s[{sc2}:{sc2+1}]" for i in range(0, 8, 2)]
        r += [f"v_exp_f32 v{g+i}, v{g+i}" for i in range(8)]
        r += [f"v_pk_add_f32 {vr(g+i, 2)}, {vr(g+i, 2)}, 1.0 op_sel_hi:[1,0]" for i in range(0, 8, 2)]
        r += [f"v_rcp_f32 v{g+i}, v{g+i}" for i in range(8)]
        r += [f"v_pk_mul_f32 {vr(g+i, 2)}, {vr(g+i, 2)}, {vr(u+i, 2)}" for i in range(0, 8, 2)]
    else:
        r += [f"v_mul_f32 v{g+i}, s{sc2}, v{g+i}" for i in range(8)]
        r += [f"v_exp_f32 v{g+i}, v{g+i}" for i in range(8)]
        r += [f"v_add_f32 v{g+i}, 1.0, v{g+i}" for i in range(8)]
        r += [f"v_rcp_f32 v{g+i}, v{g+i}" for i in range(8)]
        r += [f"v_mul_f32 v{g+i}, v{g+i}, v{u+i}" for i in range(8)]
    r += [f"v_cvt_pk_bf16_f32 v{u+i}, v{g+2*i}, v{g+2*i+1}" for i in range(4)]
    r.append(f"buffer_store_dwordx4 {vr(u, 4)}, v{v16}, s[{WS}:{WS+3}], s{sf if tt else se} offen offset:{WS_H + (2 * jj + hf) * 1024} sc1")
    return r
for k in range(8): a("\n".join(epi_group(k)))
S()
ta, tb, tc, td = vax[0] + (vax[0] & 1), vax[0] + (vax[0] & 1) + 1, vxb[0] + (vxb[0] & 1), vxb[0] + (vxb[0] & 1) + 1
vpoll, om = t1, t2
SK = acc[4]
def skip_term():
    for p in range(8):
        a(f"""v_lshlrev_b32 v{ta}, 16, v{U+p}
        v_and_b32 v{tb}, 0xffff0000, v{U+p}
        v_lshlrev_b32 v{tc}, 16, v{DK+p}
        v_and_b32 v{td}, 0xffff0000, v{DK+p}
        v_pk_mul_f32 {vr(ta, 2)}, {vr(ta, 2)}, {vr(tc, 2)}
        v_cvt_pk_bf16_f32 v{SK+p}, v{ta}, v{tb}""")
lds_signal(vmisc, vone, 24)
a("s_waitcnt vmcnt(8)")
skip_term()
def r1_to_regs():
    lds_wait(vmisc, t0, 4, 4)
    if OPT["p2"]: S()
    for n in range(12):
        a("\n".join(wd_read(WR[n], n)))
        if n & 1 and n > 1: a("s_waitcnt lgkmcnt(6)")
a(f"""v_mov_b32 v{t0}, 0
s_waitcnt vmcnt(0) lgkmcnt(0)
s_mov_b64 exec, 1
buffer_store_dword v{t3}, v{t0}, s[{WS}:{WS+3}], s{sc} offen sc1
s_mov_b64 exec, -1""")
S()
a.label("C_p2")
a(f"s_setprio {OPT['cprio2']}")
a(f"v_readfirstlane_b32 s{stok}, v{t3}\ns_mov_b32 s{sa}, {WS_GATE}")
r1_to_regs()
a("s_waitcnt lgkmcnt(0)")
if OPT["p2"]: S()
dm = [wd_dma1(n, h, sl, vod) for n in range(12, 24) for h in range(2)]
PA = OPT["pollat"]
a("\n".join(dm[:PA]))
a(f"s_mov_b64 exec, 0x7f\nbuffer_load_dword v{vpoll}, v{vfl}, s[{WS}:{WS+3}], s{sfh} offen sc1\ns_mov_b64 exec, -1")
a("\n".join(dm[PA:]))
a(f"s_waitcnt vmcnt({24 - PA})")
if OPT["p2"]: S()
poll_flags(vpoll, vfl, sfh, 7, first_issued=True, ssleep=OPT["auxsleep"])
S()
issued = []
acc2 = acc[:4]
free = [acc[4] + 8 * i for i in range(1, 8)]
hreg = {}
def h_load(n):
    r = free.pop(0); hreg[n] = r
    return [(("h", n, tt), f"buffer_load_dwordx4 {vr(r + 4 * tt, 4)}, v{vh + tt}, s[{WS}:{WS+3}], s{SH[n >> 2]} offen offset:{(n & 3) * 1024} sc1") for tt in range(2)]
def vm_wait(needs):
    idx = [issued.index(x) for x in needs if x in issued]
    if idx: a(f"s_waitcnt vmcnt({len(issued) - 1 - max(idx)})")
nh = 0
for n in range(7):
    for nm_, tx in h_load(n): a(tx); issued.append(nm_)
    nh += 1
pend = []
G = vaw
def y_loads():
    r = [f"s_mov_b32 s{st}, {WS_Y2 + (4 * (k >> 1) + (k & 1)) * 16384}\nbuffer_load_dwordx2 {vr(Y[k >> 2] + 2 * (k & 3), 2)}, v{vy}, s[{WS}:{WS+3}], s{st} offen sc1" for k in range(8)]
    return r + [f"buffer_load_dwordx2 {vr(G, 2)}, v{vg}, s[{WS}:{WS+3}], s{sa} offen sc1"]
for n in range(28):
    rd = []
    if 12 <= n + 1 < 28:
        vm_wait([("w", n + 1, 0), ("w", n + 1, 1)])
        rd = wd_read(WT[(n + 1) & 1], n + 1)
    vm_wait([("h", n, 1)])
    if n >= 12: a("s_waitcnt lgkmcnt(0)")
    w = WR[n] if n < 12 else WT[n & 1]
    q = 0
    for j in range(2):
        for tt in range(2):
            ac = vr(acc2[2 * j + tt], 16)
            a(f"v_mfma_f32_32x32x16_bf16 {ac}, {vr(w + 4 * j, 4)}, {vr(hreg[n] + 4 * tt, 4)}, {ac if n else 0}")
            if q < 2 and rd: a("\n".join(rd[2 * q:2 * q + 2]))
            q += 1
            if pend: nm_, tx = pend.pop(0); a(tx); issued.append(nm_)
    if OPT["p2"] and n in (0, 5, 11, 17, 22): S()
    free.append(hreg[n])
    if 2 <= n < 12: free.append(WR[n])
    k_ = 0
    while nh < 28 and nh - (n + 1) < OPT["hd"] and k_ < 2 and free and len(pend) < 3: pend += h_load(nh); nh += 1; k_ += 1
    if 12 <= n < 16: pend += [(("w", n + 12, h), wd_dma1(n + 12, h, sl, vod)) for h in range(2)]
    if n == OPT["ystep"]:
        Y = [free.pop(0), free.pop(0)]
        pend += [(("y", k), tx) for k, tx in enumerate(y_loads())]
assert not pend and nh == 28
S()
T1 = [free.pop(0), free.pop(0)]; P_ = [[free.pop(0), free.pop(0)] for _ in range(3)]
def roff(i, qd): p = (i - 1) * 4 + qd; return (p >> 1) * 8192 + (p & 1) * 1024
a(f"v_add_u32 v{t0}, s{sl}, v{v16}")
for i in range(1, 4):
    for qd in range(4): a(f"ds_write_b128 v{t0}, {vr(acc2[i] + 4 * qd, 4)} offset:{roff(i, qd)}")
a(f"s_mov_b32 s{sspin}, 0")
a.label("C_y")
a("s_waitcnt vmcnt(0)")
a(f"v_xor_b32 v{ta}, s{stok}, v{G+1}")
for k in range(8): a(f"v_xor_b32 v{tb}, s{stok}, v{Y[k >> 2] + 2 * (k & 3) + 1}\nv_or_b32 v{ta}, v{ta}, v{tb}")
a(f"""v_cmp_ne_u32 vcc, 0, v{ta}
s_add_u32 s{sspin}, s{sspin}, 1
s_cbranch_vccz C_y_ok
s_sleep {OPT["sleep"]}""")
a("\n".join(y_loads()))
a(f"s_cmp_lt_u32 s{sspin}, {SPIN}\ns_cbranch_scc1 C_y")
a.label("C_y_ok")
if OPT["p2"]: S()
a(f"v_sub_f32 v{om}, 1.0, v{G}\nv_mov_b32 v{G+1}, v{G}\nv_cvt_pk_bf16_f32 v{om}, v{om}, v{om}\nv_lshlrev_b32 v{om}, 16, v{om}")
for p in range(8):
    y = Y[p >> 2] + 2 * (p & 3); t = T1[p >> 2] + 2 * (p & 3)
    a(f"""v_lshlrev_b32 v{ta}, 16, v{SK+p}
    v_and_b32 v{tb}, 0xffff0000, v{SK+p}
    v_lshlrev_b32 v{tc}, 16, v{y}
    v_and_b32 v{td}, 0xffff0000, v{y}
    v_pk_add_f32 {vr(ta, 2)}, {vr(ta, 2)}, {vr(tc, 2)}
    v_cvt_pk_bf16_f32 v{ta}, v{ta}, v{tb}
    v_and_b32 v{tb}, 0xffff0000, v{ta}
    v_lshlrev_b32 v{ta}, 16, v{ta}
    v_pk_mul_f32 {vr(t, 2)}, {vr(ta, 2)}, {vr(G, 2)}""")
for i in range(1, 4): a(f"v_xor_b32 v{vd + i}, {i * 2048}, v{t0}")
a(f"v_lshrrev_b32 v{t1}, 5, v{lane}\nv_lshl_add_u32 v{vx}, v{t1}, 3, v{vx}\nv_mov_b32 v{G}, v{om}\nv_mov_b32 v{G+1}, v{om}")
a("s_waitcnt lgkmcnt(0)\ns_barrier")
S()
for i in range(3):
    for qd in range(4): a(f"ds_read_b128 {vr(P_[i][qd >> 1] + 4 * (qd & 1), 4)}, v{vd + i + 1} offset:{roff(i + 1, qd)}")
def pr(i, r): return P_[i][r >> 3] + (r & 7)
a("s_waitcnt lgkmcnt(8)")
for r in range(0, 16, 2): a(f"v_pk_add_f32 {vr(acc2[0]+r, 2)}, {vr(acc2[0]+r, 2)}, {vr(pr(0, r), 2)}")
a("s_waitcnt lgkmcnt(4)")
for r in range(0, 16, 2): a(f"v_pk_add_f32 {vr(acc2[0]+r, 2)}, {vr(acc2[0]+r, 2)}, {vr(pr(1, r), 2)}")
a("s_waitcnt lgkmcnt(0)")
for r in range(0, 16, 2): a(f"v_pk_add_f32 {vr(acc2[0]+r, 2)}, {vr(acc2[0]+r, 2)}, {vr(pr(2, r), 2)}")
for r in range(0, 16, 2): a(f"v_pk_fma_f32 {vr(acc2[0]+r, 2)}, {vr(acc2[0]+r, 2)}, {vr(G, 2)}, {vr(T1[r >> 3] + (r & 7), 2)}")
O = acc2[1]
for p in range(8): a(f"v_cvt_pk_bf16_f32 v{O+p}, v{acc2[0]+2*p}, v{acc2[0]+2*p+1}")
for k in (0, 2):
    a(f"v_permlane32_swap_b32 v{O+2*k}, v{O+2*k+2}\nv_permlane32_swap_b32 v{O+2*k+1}, v{O+2*k+3}")
    a(f"buffer_store_dwordx4 {vr(O + 2 * k, 4)}, v{vx}, s[{OUT}:{OUT+3}], 0 offen offset:{16 * k}")
S()
S.flush(t0)
a("s_endpgm")

a.label("C_aux")
S.n = nst_common
rows = [acc[0] + 4 * r for r in range(16)]; gw = F[0]; gf = F[0] + 8; xa = F[0] + 16; xb = xa + 1; sums = F[1]; vw = xa + 2
d0 = [acc[4] + 4 * i for i in range(16)]; va = xa + 3; vo = xa + 4; vpf = xa + 5; vtk = vax[3]
sax = sf
a(f"""s_sub_u32 s{sax}, s2, 224
s_lshl_b32 s{st}, s{sax}, 16
s_lshl_b32 s{st2}, s{sw}, 14
s_add_u32 s{st}, s{st}, s{st2}
s_and_b32 s{sa}, s{sw}, 2
s_lshl_b32 s{sa}, s{sa}, 4
v_xor_b32 v{vw}, s{sa}, v{v16}
v_add_u32 v{vw}, s{st2}, v{vw}""")
for r in range(16):
    a(f"buffer_load_dwordx4 {vr(rows[r], 4)}, v{v16}, s[{X}:{X+3}], s{st} offen offset:{(r & 3) * 1024}")
    if r & 3 == 3: a(f"s_add_u32 s{st}, s{st}, 4096")
a(f"global_load_dwordx4 {vr(gw, 4)}, v{v16}, s[{P_GW}:{P_GW+1}]")
a(f"""v_bfe_u32 v{t0}, v{lane}, 2, 2
v_bfe_u32 v{t1}, v{lane}, 4, 1
v_lshrrev_b32 v{t2}, 5, v{lane}
v_lshlrev_b32 v{va}, 15, v{t1}
v_lshl_add_u32 v{va}, v{t0}, 12, v{va}
v_lshl_add_u32 v{va}, v{t2}, 11, v{va}
v_lshl_add_u32 v{t2}, v{t0}, 1, v{t1}
v_lshl_add_u32 v{va}, v{t2}, 5, v{va}
s_lshl_b32 s{st}, s{sw}, 8
v_add_u32 v{va}, s{st}, v{va}
v_and_b32 v{t0}, 3, v{lane}
v_lshl_add_u32 v{va}, v{t0}, 3, v{va}
v_bfe_u32 v{t0}, v{lane}, 1, 3
v_lshlrev_b32 v{vo}, 13, v{t0}
v_and_b32 v{t0}, 1, v{lane}
v_lshl_add_u32 v{vo}, v{t0}, 6, v{vo}
v_lshrrev_b32 v{t0}, 4, v{lane}
v_lshl_add_u32 v{vo}, v{t0}, 4, v{vo}
v_lshlrev_b32 v{vpf}, 7, v{lane}""")
for r in range(16):
    a(f"s_waitcnt vmcnt({16 - r})")
    a(f"v_xor_b32 v{t0}, {(r >> 2) * 64}, v{vw}\nds_write_b128 v{t0}, {vr(rows[r], 4)} offset:{r * 1024}")
a(f"v_mov_b32 v{t1}, 0\nglobal_load_dword v{vtk}, v{t1}, s[{P_DBG}:{P_DBG+1}] sc1")
a("s_waitcnt lgkmcnt(0)\ns_barrier")
S()
a(f"s_lshl_b32 s{st}, s{sw}, 19\ns_lshl_b32 s{st2}, s{sax}, 8\ns_add_u32 s{st}, s{st}, s{st2}\ns_add_u32 s{st}, s{st}, {WS_UT}")
for db in range(8):
    a(f"v_xor_b32 v{t0}, {db * 32}, v{va}")
    for h in range(2):
        r = d0[2 * db + h]
        a(f"ds_read_b64_tr_b16 {vr(r, 2)}, v{t0} offset:{h * 1024}\nds_read_b64_tr_b16 {vr(r + 2, 2)}, v{t0} offset:{h * 1024 + 16384}")
    if db >= 1:
        a("s_waitcnt lgkmcnt(4)")
        for h in range(2):
            a(f"buffer_store_dwordx4 {vr(d0[2 * db - 2 + h], 4)}, v{vo}, s[{WS}:{WS+3}], s{st} offen offset:{h * 128} sc1")
        a(f"s_add_u32 s{st}, s{st}, 65536")
a("s_waitcnt lgkmcnt(0)")
for h in range(2):
    a(f"buffer_store_dwordx4 {vr(d0[14 + h], 4)}, v{vo}, s[{WS}:{WS+3}], s{st} offen offset:{h * 128} sc1")
a("s_barrier")
for i in range(4):
    a(f"v_lshlrev_b32 v{gf+2*i}, 16, v{gw+i}\nv_and_b32 v{gf+2*i+1}, 0xffff0000, v{gw+i}")
def gate_row(r):
    for i in range(4):
        a(f"""v_lshlrev_b32 v{xa}, 16, v{rows[r]+i}
        v_and_b32 v{xb}, 0xffff0000, v{rows[r]+i}
        v_pk_mul_f32 {vr(xa, 2)}, {vr(xa, 2)}, {vr(gf + 2 * i, 2)}
        v_cvt_pk_bf16_f32 v{xa}, v{xa}, v{xb}
        v_and_b32 v{xb}, 0xffff0000, v{xa}
        v_lshlrev_b32 v{xa}, 16, v{xa}""")
        if i == 0: a(f"v_add_f32 v{sums+r}, v{xa}, v{xb}")
        else: a(f"v_add_f32 v{sums+r}, v{sums+r}, v{xa}\nv_add_f32 v{sums+r}, v{sums+r}, v{xb}")
for r in range(6):
    gate_row(r)
    if r & 1: a("s_barrier")
a(f"s_mov_b32 s{sspin}, 0")
a.label("Caux_tok")
a(f"""s_waitcnt vmcnt(0)
v_readfirstlane_b32 s{stok}, v{vtk}
s_add_u32 s{sspin}, s{sspin}, 1
s_cmp_lg_u32 s{stok}, 0
s_cbranch_scc1 Caux_tok_ok
global_load_dword v{vtk}, v{t1}, s[{P_DBG}:{P_DBG+1}] sc1
s_cmp_lt_u32 s{sspin}, {SPIN}
s_cbranch_scc1 Caux_tok""")
a.label("Caux_tok_ok")
a(f"""s_lshl_b32 s{st}, s{sw}, 7
s_lshl_b32 s{st2}, s{sax}, 2
s_add_u32 s{st}, s{st}, s{st2}
s_add_u32 s{st}, s{st}, {WS_FU}
s_mov_b64 exec, 1
buffer_store_dword v{vtk}, v{t1}, s[{WS}:{WS+3}], s{st} offen sc1
s_mov_b64 exec, -1""")
S()
if OPT["pf"] == 1:
    a(f"""s_lshl_b32 s{st}, s{sax}, 2
    s_add_u32 s{st}, s{st}, s{sw}
    s_mul_i32 s{st}, s{st}, 14336
    s_add_u32 s{st2}, s{st}, 6144
    buffer_load_dword v{d0[0]}, v{vpf}, s[{WD}:{WD+3}], s{st} offen
    buffer_load_dword v{d0[0]+1}, v{vpf}, s[{WD}:{WD+3}], s{st2} offen""")
for r in range(6, 16):
    gate_row(r)
    a("s_barrier")
for mod in ("quad_perm:[1,0,3,2] row_mask:0xf", "quad_perm:[2,3,0,1] row_mask:0xf", "row_half_mirror row_mask:0xf", "row_mirror row_mask:0xf", "row_bcast:15 row_mask:0xa", "row_bcast:31 row_mask:0xc"):
    for r in range(16): a(f"v_add_f32_dpp v{sums+r}, v{sums+r}, v{sums+r} {mod} bank_mask:0xf")
lds_signal(vmisc, vone, 20)
for r in range(0, 16, 4):
    for i in range(4): a(f"v_readlane_b32 s{P_PRM + i}, v{sums+r+i}, 63")
    for i in range(4): a(f"v_writelane_b32 v{xa}, s{P_PRM + i}, {r+i}")
a(f"""v_cvt_pk_bf16_f32 v{xa}, v{xa}, v{xa}
v_lshlrev_b32 v{xa}, 16, v{xa}
v_mul_f32 v{xa}, {NLOG2E}, v{xa}
v_exp_f32 v{xa}, v{xa}
v_add_f32 v{xa}, 1.0, v{xa}
v_rcp_f32 v{xa}, v{xa}
v_cvt_pk_bf16_f32 v{xa}, v{xa}, v{xa}
v_lshlrev_b32 v{xa}, 16, v{xa}
v_mov_b32 v{xb}, v{vtk}
v_lshlrev_b32 v{t0}, 3, v{lane}
s_lshl_b32 s{st}, s{sax}, 9
s_lshl_b32 s{st2}, s{sw}, 7
s_add_u32 s{st}, s{st}, s{st2}
s_add_u32 s{st}, s{st}, {WS_GATE}
s_mov_b64 exec, 0xffff
buffer_store_dwordx2 {vr(xa, 2)}, v{t0}, s[{WS}:{WS+3}], s{st} offen sc1
s_mov_b64 exec, -1
v_mov_b32 v{t3}, v{vtk}""")
a("\n".join(ud_loads))
lds_signal(vmisc, vone, 24)
a("s_waitcnt vmcnt(0)")
skip_term()
if DIAG: S.n = 6
a("s_branch C_p2")
vhiC = V.hi

a.label("L_role")
S.n = nst_common
V = Regs("v", VBASE, 256)
slw, sxb, swb, sl1k, sd_, sl2k = sa, sb, sc, sd, se, sf
vox = V.get(); vow = V.get(); vod = V.get()
a(f"""s_sub_u32 s{slw}, s{sw}, 4
s_lshl_b32 s{sxb}, s{smb}, 17
s_lshl_b32 s{swb}, s{sfb}, 8
s_lshl_b32 s{sl1k}, s{slw}, 10
v_lshrrev_b32 v{t0}, 4, v{lane}
s_lshl_b32 s{st}, s{slw}, 2
v_add_u32 v{t1}, s{st}, v{t0}
v_xor_b32 v{t2}, v{t1}, v{lane}
v_and_b32 v{t2}, 7, v{t2}
v_lshlrev_b32 v{t2}, 4, v{t2}
v_bfe_u32 v{vox}, v0, 3, 5
v_lshl_add_u32 v{vox}, v{vox}, 10, v{t2}
v_mul_u32_u24 v{vow}, 3584, v{t1}
v_lshlrev_b32 v{t0}, 2, v{t0}
v_xor_b32 v{t0}, v{t0}, v{lane}
v_and_b32 v{t0}, 15, v{t0}
v_lshl_add_u32 v{vow}, v{t0}, 4, v{vow}""")
QROT = len(a.lines)
a("s_waitcnt lgkmcnt(0)")
mksrd(X, P_X, 2097152); mksrd(WG, P_WG, 1835008); mksrd(WU, P_WU, 1835008)
issued = []
SWQ = SH[:4]; SXQ = SH[4:] + [S_.get()]
def dma_x(j, i):
    return (("x", j, i), f"s_add_u32 m0, s{sl1k}, {xslot(j) + i * 4096}\ns_add_u32 s{st}, s{SXQ[j >> 1]}, {(j & 1) * 128 + i * 32768}\nbuffer_load_dwordx4 v{vox}, s[{X}:{X+3}], s{st} offen lds")
def dma_w(c):
    r = []
    for i in range(2):
        for m, srd_ in ((0, WG), (1, WU)):
            r.append((("gu"[m], c, i), f"s_add_u32 m0, s{sl1k}, {(c % 4) * 16384 + m * 8192 + i * 4096}\ns_add_u32 s{st}, s{SWQ[c >> 2]}, {(c & 3) * 114688 + i * 57344}\nbuffer_load_dwordx4 v{vow}, s[{srd_}:{srd_+3}], s{st} offen lds"))
    return r
q_ = [f"s_bfe_u32 s{st2}, s2, 0x20001" if OPT["krot"] else f"s_mov_b32 s{st2}, 0"]
for q in range(4):
    q_ += [f"s_mul_i32 s{SWQ[q]}, s{st2}, {4 * 114688}", f"s_add_u32 s{SWQ[q]}, s{SWQ[q]}, s{swb}", f"s_lshl_b32 s{SXQ[q]}, s{st2}, 8", f"s_add_u32 s{SXQ[q]}, s{SXQ[q]}, s{sxb}"]
    if q < 3: q_ += [f"s_add_u32 s{st2}, s{st2}, 1", f"s_and_b32 s{st2}, s{st2}, 3"]
a.lines[QROT:QROT] = q_
def l_wd(n): return [(("w", n, h), wd_dma1(n, h, sl2k, vod)) for h in range(2)]
def guard(txt, alt=None):
    L = newl("Lg")
    if alt is None: return f"s_cbranch_vccnz {L}\n{txt}\n{L}:"
    return f"s_cbranch_vccz {L}a\n{alt}\ns_branch {L}\n{L}a:\n{txt}\n{L}:"
def wait_ops(needs, aux_all=False):
    idx = [issued.index(x) for x in needs]
    a(f"s_waitcnt vmcnt({len(issued) - 1 - max(idx)})")
    if aux_all:
        L = newl("Lg"); a(f"s_cbranch_vccz {L}\ns_waitcnt vmcnt(0)"); a.label(L)
def chunk_ops(c): return [(m, c, i) for m in "gu" for i in range(2)] + [("x", c // 2, i) for i in range(4)]
def lines(s): return [x.strip() for x in s.strip().split("\n")]
a(f"s_mov_b32 vcc_lo, s{saux}\ns_mov_b32 vcc_hi, 0\ns_cbranch_vccnz L_nopro")
for nm_, tx in [dma_x(0, i) for i in range(4)] + dma_w(0):
    a(tx); issued.append(nm_)
a.label("L_nopro")
prm = V.get(6, 2); ldt = V.get(); ul = [V.get(4), V.get(4)]; vtk = V.get(); vpoll = V.get(); vfl = V.get(); vul = V.get(); vpf = V.get(); vdump = V.get()
a(f"""v_and_b32 v{t0}, 255, v0
s_lshl_b32 s{st}, s2, 8
v_add_lshl_u32 v{t0}, v{t0}, s{st}, 1
s_lshr_b32 s{sd_}, s{slw}, 1
s_lshl_b32 s{st2}, s2, 1
s_add_u32 s{sd_}, s{sd_}, s{st2}
s_lshl_b32 s{st2}, s{sd_}, 1
v_mov_b32 v{t1}, s{st2}
global_load_ushort v{ldt}, v{t1}, s[{P_LDT}:{P_LDT+1}]""")
issued.append("ldt")
for i in range(6):
    a(f"global_load_ushort v{prm+i}, v{t0}, s[{P_PRM+2*i}:{P_PRM+2*i+1}]"); issued.append(("prm", i))
a("s_cbranch_vccnz L_nopro2")
for nm_, tx in dma_w(1) + [dma_x(1, i) for i in range(4)]:
    a(tx); issued.append(nm_)
a.label("L_nopro2")
mksrd(WD, P_WD, 1835008)
S()
wait_ops(chunk_ops(0)); a("s_barrier")
S()
idx = V.get(); g = V.get(); kc = [V.get(4) for _ in range(3)]; z4 = V.get(4)
vz1 = V.get(); vz2 = V.get(); vu = V.get(); vtw = V.get(); vtr = V.get(); ka = V.get(3); xa_ = V.get(3); vk = V.get(); vk2 = V.get(); vA = V.get(); vB = V.get()
spa, spb = sc2, sc2 + 1
class Cap:
    def __enter__(self): self.k = len(a.lines); return self
    def __exit__(self, *x): self.l = a.lines[self.k:]; del a.lines[self.k:]
_st_real = st
with Cap() as setup0:
    a(f"""    v_and_b32 v{idx}, 15, v{lane}
    v_lshrrev_b32 v{g}, 4, v{lane}
    v_mov_b64 {vr(z4, 2)}, 0
    v_mov_b64 {vr(z4 + 2, 2)}, 0
    s_mul_i32 s{st2}, s{slw}, {KCP}
    s_add_u32 s{st2}, s{st2}, {L_KK}
    v_lshlrev_b32 v{t0}, 4, v{lane}
    v_add_u32 v{vz1}, s{st2}, v{t0}
    s_mul_i32 s{st2}, s{slw}, 2304
    s_add_u32 s{st2}, s{st2}, {L_U}
    v_add_u32 v{vz2}, s{st2}, v{t0}
    s_mul_i32 s{st2}, s{slw}, {TBS}
    s_add_u32 s{st2}, s{st2}, {L_KC}
    v_add_u32 v{vtw}, s{st2}, v{t0}""")
zero_blk = [f"""s_mov_b64 exec, 0xff
ds_write_b128 v{vz1}, {vr(z4, 4)}
ds_write_b128 v{vz2}, {vr(z4, 4)}
ds_write_b128 v{vz2}, {vr(z4, 4)} offset:1152
s_mov_b64 exec, -1"""]
setup1 = lines(f"""v_lshlrev_b32 v{vtr}, 7, v{g}
v_bfe_u32 v{t2}, v{lane}, 2, 2
v_lshl_add_u32 v{vtr}, v{t2}, 4, v{vtr}
v_bfe_u32 v{t2}, v{lane}, 1, 1
v_mul_u32_u24 v{t3}, 1088, v{t2}
v_add3_u32 v{vtr}, v{vtr}, v{t3}, s{st2}
v_and_b32 v{t3}, 1, v{lane}
v_lshl_add_u32 v{vtr}, v{t3}, 3, v{vtr}
v_lshlrev_b32 v{vfl}, 2, v{lane}
v_mul_u32_u24 v{t2}, 1152, v{t2}
v_sub_u32 v{vu}, v{vz2}, v{t0}
v_lshl_add_u32 v{t2}, v{t3}, 4, v{t2}
v_lshrrev_b32 v{t3}, 2, v{lane}
v_lshl_add_u32 v{t2}, v{t3}, 5, v{t2}
v_add_u32 v{vu}, v{vu}, v{t2}
v_lshlrev_b32 v{vul}, 8, v{t3}
v_and_b32 v{t3}, 3, v{lane}
v_lshl_add_u32 v{vul}, v{t3}, 4, v{vul}""")
mk = V.mark()
pa_, pb_ = V.get(), V.get()
Z = {k: V.get(2) for k in ("w", "1", "2", "4", "8", "16", "256", "c0", "c1", "d0", "d1", "e0", "e1", "p0", "p1")}
tq = [V.get() for _ in range(4)]
PK = [[V.get(8, 4), V.get(8, 4)] for _ in range(4)]
FB = [V.get(4) for _ in range(4)]; FA = [[V.get(4) for _ in range(4)] for _ in range(3)]
prep = lines(f"""s_mov_b32 s{st2}, {LOG2E}
v_lshlrev_b32 v{ldt}, 16, v{ldt}
v_mul_f32 v{ldt}, s{st2}, v{ldt}
v_exp_f32 v{ldt}, v{ldt}""") + [f"v_lshlrev_b32 v{prm+i}, 16, v{prm+i}" for i in range(6)] + lines(f"""v_cvt_pk_bf16_f32 v{ldt}, v{ldt}, v{ldt}
v_lshlrev_b32 v{ldt}, 16, v{ldt}
v_mul_f32 v{pa_}, v{ldt}, v{prm}
v_mul_f32 v{pb_}, v{ldt}, v{prm+1}
v_mul_f32 v{prm+2}, v{ldt}, v{prm+2}
v_mul_f32 v{prm+3}, v{ldt}, v{prm+3}
v_mul_f32 v{pa_}, s{st2}, v{pa_}
v_mul_f32 v{pb_}, {INV2PI}, v{pb_}
v_mul_f32 v{Z["w"]}, v{prm+4}, v{prm+2}
v_mul_f32 v{Z["w"]+1}, v{prm+4}, v{prm+3}
v_fma_f32 v{Z["w"]}, -v{prm+5}, v{prm+3}, v{Z["w"]}
v_fma_f32 v{Z["w"]+1}, v{prm+5}, v{prm+2}, v{Z["w"]+1}""")
def direct3():
    r = []
    ds_ = [("1", None, "c0"), ("16", 0x41800000, "c1"), ("256", 0x43800000, "d0")]
    for nm_, lit, tmp in ds_:
        if lit: r += [f"v_mul_f32 v{Z[tmp]}, {lit:#x}, v{pa_}", f"v_mul_f32 v{Z[tmp]+1}, {lit:#x}, v{pb_}"]
    for nm_, lit, tmp in ds_:
        r += [f"v_exp_f32 v{Z[tmp]}, v{Z[tmp] if lit else pa_}", f"v_fract_f32 v{Z[tmp]+1}, v{Z[tmp]+1 if lit else pb_}"]
    for nm_, lit, tmp in ds_: r += [f"v_cos_f32 v{Z[nm_]}, v{Z[tmp]+1}", f"v_sin_f32 v{Z[nm_]+1}, v{Z[tmp]+1}"]
    for nm_, lit, tmp in ds_: r += [f"v_mul_f32 v{Z[nm_]}, v{Z[tmp]}, v{Z[nm_]}", f"v_mul_f32 v{Z[nm_]+1}, v{Z[tmp]}, v{Z[nm_]+1}"]
    return r
def cmul(d, x, y, k):
    d, x, y = Z[d], Z[x], Z[y]; u, v = tq[2 * k], tq[2 * k + 1]
    return [f"v_mul_f32 v{u}, v{x+1}, v{y+1}", f"v_mul_f32 v{v}, v{x}, v{y+1}", f"v_fma_f32 v{d}, v{x}, v{y}, -v{u}", f"v_fma_f32 v{d+1}, v{x+1}, v{y}, v{v}"]
def pack(tile, r, lo, hi):
    n = "-" if tile == 0 else ""
    lr, li = (("1.0", "0") if lo is None else (f"v{Z[lo]}", f"{n}v{Z[lo]+1}"))
    return [f"v_cvt_pk_bf16_f32 v{PK[tile][0] + r // 2}, {lr}, v{Z[hi]}", f"v_cvt_pk_bf16_f32 v{PK[tile][1] + r // 2}, {li}, {n}v{Z[hi]+1}"]
def tile_io(tile):
    w_ = [f"ds_write_b128 v{vtw}, {vr(PK[tile][pl] + 4 * hf, 4)} offset:{pl * 2176 + hf * 1088}" for pl in range(2) for hf in range(2)]
    if tile == 3:
        for pl in range(2): w_[2 * pl + 1] = f"ds_write_b32 v{vtw}, v{PK[tile][pl] + 4} offset:{pl * 2176 + 1088}"
    dst = FB if tile == 0 else FA[tile - 1]
    r_ = [f"ds_read_b64_tr_b16 {vr(dst[2 * pl + kk] + 2 * e, 2)}, v{vtr} offset:{pl * 2176 + kk * 512 + e * 64}" for pl in range(2) for kk in range(2) for e in range(2)]
    return w_ + r_
def tile_mm(tile):
    mm_ = [f"v_mfma_f32_16x16x32_bf16 {vr(kc[tile - 1], 4)}, {vr(FA[tile - 1][i], 4)}, {vr(FB[i], 4)}, {vr(kc[tile - 1], 4) if i else 0}" for i in range(4)]
    if OPT["lmp"]: return ["s_waitcnt lgkmcnt(0)\ns_setprio 3\n" + "\n".join(mm_) + "\ns_setprio 0"]
    return ["s_waitcnt lgkmcnt(0)"] + mm_
def zip2(x, y):
    out = []
    for i in range(max(len(x), len(y))):
        if i < len(x): out.append(x[i])
        if i < len(y): out.append(y[i])
    return out
chB = []; prev = "w"
for r in range(1, 16):
    cur = "c%d" % (r & 1); chB += cmul(cur, prev, "16", 0)
    if r & 1: chB += pack(0, r, prev, cur)
    prev = cur
ch0 = pack(1, 1, None, "1"); prev = "1"
for r in range(2, 16):
    cur = str(r) if r in (2, 4, 8) else "d%d" % (r & 1); ch0 += cmul(cur, prev, "1", 1)
    if r & 1: ch0 += pack(1, r, prev, cur)
    prev = cur
ch1 = []; prev = "256"
for r in range(1, 8):
    cur = "c%d" % (r & 1); ch1 += cmul(cur, prev, "2", 0)
    if r & 1: ch1 += pack(2, r, prev, cur)
    prev = cur
ch2 = []; pw = "256"
for m in range(2, 9):
    cur = "p%d" % (m & 1); ch2 += cmul(cur, pw, "256", 1); pw = cur
    if m < 4:
        b0 = 8 + 4 * (m - 2)
        ch2 += cmul("d1", cur, "4", 1) + pack(2, b0 + 1, cur, "d1") + cmul("d0", "d1", "4", 1) + cmul("d1", "d0", "4", 1) + pack(2, b0 + 3, "d0", "d1")
    elif m < 8:
        ch2 += cmul("d1", cur, "8", 1) + pack(3, 2 * (m - 4) + 1, cur, "d1")
    else:
        ch2 += pack(3, 9, cur, cur)
n1 = 2 * (4 + 12 + 4)
def spread(main, ins, start, gap):
    out = list(main[:start]); k = 0
    for i, x in enumerate(main[start:]):
        if i % gap == 0 and k < len(ins): out.append(ins[k]); k += 1
        out.append(x)
    return out + ins[k:]
def wr(tile, hf): return [tile_io(tile)[2 * pl + hf] for pl in range(2)]
def rdt(tile): x = tile_io(tile)[4:]; return ["\n".join(x[i:i + 2]) for i in range(0, 8, 2)]
hB = 7 * 4 + 4 * 2
partA = direct3() + chB[:hB]
partB = spread(chB[hB:], wr(0, 0), 0, 16)
partC = spread(ch0, wr(0, 1) + rdt(0), 0, 10)
pD = ch1 + ch2[:n1]
partD = spread(pD, wr(1, 0) + wr(1, 1) + rdt(1), 0, 9)
partE = spread(ch2[n1:], wr(2, 0) + wr(2, 1) + rdt(2), 0, 5)
kg = partA + partB + partC + partD + partE
print("kgen instrs", len(kg), file=sys.stderr)
V2 = Regs("v", mk, 256)
E = [V2.get(4) for _ in range(8)]; o = V2.get(2)
V3 = Regs("v", mk, 256)
cacc = [V3.get(4) for _ in range(8)]
B = [V3.get(4) for _ in range(16)]; NA = 8; A = [V3.get(4) for _ in range(NA)]
V.hi = max(V.hi, V2.hi, V3.hi)
def rdA(ph, s): return f"ds_read_b64_tr_b16 {vr(A[s % NA], 2)}, v{vA} offset:{ph * KCP + 256 * s + 32}\nds_read_b64_tr_b16 {vr(A[s % NA] + 2, 2)}, v{vA} offset:{ph * KCP + 256 * s}"
def rdB(ph, r): return f"ds_read_b64 {vr(B[r], 2)}, v{vB} offset:{ph * 1152 + 64 * r}\nds_read_b64 {vr(B[r] + 2, 2)}, v{vB} offset:{ph * 1152 + 64 * r + 8}"
pf_txt = f"""s_add_u32 s{st}, s{spa}, s{spb}
buffer_load_dword v{vdump}, v{vpf}, s[{WD}:{WD+3}], s{st} offen
s_add_u32 s{spb}, s{spb}, 8192
s_cmp_eq_u32 s{spb}, 114688
s_cselect_b32 s{spb}, 0, s{spb}"""
K0, K1 = OPT["k0"], OPT["k1"]
def put(b, r0, r1, r2, r3):
    return lines(f"""v_cvt_pk_bf16_f32 v{o}, v{r0}, v{r1}
    v_cvt_pk_bf16_f32 v{o+1}, v{r2}, v{r3}
    ds_write_b64 v{vk}, {vr(o, 2)} offset:{512 * b}
    ds_write_b32 v{vk2}, v{o} offset:{512 * b}
    ds_write_b32 v{vk2}, v{o+1} offset:{512 * b + 4}""")
addr2 = lines(f"""s_mul_i32 s{st2}, s{slw}, {TBS}
        s_add_u32 s{st2}, s{st2}, {L_KC}
        v_lshlrev_b32 v{ka}, 6, v{idx}
        v_lshl_add_u32 v{ka}, v{g}, 4, v{ka}
        v_add_u32 v{ka}, s{st2}, v{ka}
        v_lshlrev_b32 v{ka+1}, 5, v{idx}
        v_cmp_gt_u32 vcc, 2, v{g}
        v_lshl_add_u32 v{ka+1}, v{g}, 4, v{ka+1}
        v_lshlrev_b32 v{ka+2}, 4, v{idx}
        v_lshl_add_u32 v{ka+2}, v{g}, 8, v{ka+2}
        v_cndmask_b32 v{ka+1}, v{ka+2}, v{ka+1}, vcc
        v_add_u32 v{ka+1}, s{st2}, v{ka+1}
        v_lshlrev_b32 v{ka+2}, 3, v{idx}
        v_lshl_add_u32 v{ka+2}, v{g}, 8, v{ka+2}
        v_add_u32 v{ka+2}, s{st2}, v{ka+2}
        s_and_b32 s{sxb}, s{slw}, 2
        s_mul_i32 s{st2}, s{sxb}, {KCP}
        s_mul_i32 s{sxb}, s{sxb}, {TBS}
        s_add_u32 s{sxb}, s{sxb}, {L_KC}
        s_add_u32 s{st2}, s{st2}, {L_KK + 32}
        v_lshlrev_b32 v{vk}, 3, v{lane}
        v_add_u32 v{vk}, s{st2}, v{vk}
        v_add_u32 v{vk2}, {KCP + 4}, v{vk}
        s_add_u32 s{st2}, s{st2}, 192
        v_and_b32 v{t0}, 3, v{lane}
        v_bfe_u32 v{t2}, v{lane}, 2, 2
        v_sub_u32 v{t0}, v{t0}, v{t2}
        v_lshlrev_b32 v{t2}, 3, v{g}
        v_sub_u32 v{t0}, v{t0}, v{t2}
        v_lshlrev_b32 v{t0}, 3, v{t0}
        v_add_u32 v{vA}, s{st2}, v{t0}
        s_mul_i32 s{st2}, s{slw}, 2304
        s_add_u32 s{st2}, s{st2}, {L_U + 8}
        v_lshlrev_b32 v{t0}, 3, v{idx}
        v_lshl_add_u32 v{t0}, v{g}, 4, v{t0}
        v_add_u32 v{vB}, s{st2}, v{t0}""")
uload = f"""s_lshl_b32 s{sxb}, s2, 13
s_and_b32 s{st2}, s{slw}, 1
s_lshl_b32 s{st2}, s{st2}, 7
s_add_u32 s{sxb}, s{sxb}, s{st2}
s_and_b32 s{st2}, s{slw}, 2
s_lshl_b32 s{st2}, s{st2}, 5
s_add_u32 s{sxb}, s{sxb}, s{st2}
s_add_u32 s{sxb}, s{sxb}, {WS_UT}
s_add_u32 s{st2}, s{sxb}, 4096
buffer_load_dwordx4 {vr(ul[0], 4)}, v{vul}, s[{WS}:{WS+3}], s{sxb} offen sc1
buffer_load_dwordx4 {vr(ul[1], 4)}, v{vul}, s[{WS}:{WS+3}], s{st2} offen sc1"""
for c in range(14):
    raw = []
    if c == 0: raw = dma_w(2) + dma_w(3)
    elif c == 1: raw = [dma_x(2, i) for i in range(4)] + dma_w(4)
    elif c < 12: raw = [dma_x(c // 2 + 2, 2 * (c & 1) + i) for i in range(2)] + dma_w(c + 3)
    elif c == 12: raw = dma_w(15)
    dl = [([raw[k][0], raw[k + 1][0]], guard(raw[k][1] + "\n" + raw[k + 1][1])) for k in range(0, len(raw), 2)]
    bg = []
    if c == 1:
        wait_ops(["ldt", ("prm", 5)], aux_all=True)
        bg = [f"v_lshlrev_b32 v{vpf}, 7, v{lane}"] + prep
    if K0 <= c <= K1: bg = bg + kg[(c - K0) * len(kg) // (K1 - K0 + 1): (c - K0 + 1) * len(kg) // (K1 - K0 + 1)]
    if OPT["pf"] == 3 and OPT["pf0"] <= c < OPT["pf0"] + 8:
        L_ = newl("Lpf")
        a(f"""s_cmp_lg_u32 s{slw}, {c & 3}
        s_cbranch_scc1 {L_}
        s_cmp_lg_u32 s{saux}, 0
        s_cbranch_scc1 {L_}
        s_lshr_b32 s{st}, s2, 3
        s_mul_i32 s{spa}, s2, 28
        s_add_u32 s{st}, s{st}, s{spa}
        s_add_u32 s{st}, s{st}, {(c - OPT["pf0"]) * 28}
        s_mul_hi_u32 s{spa}, s{st}, {(1 << 32) // 224 + 1}
        s_mul_i32 s{spa}, s{spa}, 224
        s_sub_u32 s{st}, s{st}, s{spa}
        s_lshl_b32 s{st}, s{st}, 13
        buffer_load_dword v{vdump}, v{vpf}, s[{WD}:{WD+3}], s{st} offen""")
        a.label(L_)
    if c == 4:
        a(f"v_mov_b32 v{t1}, 0\nglobal_load_dword v{vtk}, v{t1}, s[{P_DBG}:{P_DBG+1}] sc1"); issued.append("tok")
    if c == 8:
        wait_ops(["tok"], aux_all=True)
        a(f"s_mov_b32 s{sspin}, 0")
        a.label("L_tok")
        a(f"""v_readfirstlane_b32 s{stok}, v{vtk}
        s_add_u32 s{sspin}, s{sspin}, 1
        s_cmp_lg_u32 s{stok}, 0
        s_cbranch_scc1 L_tok_ok
        global_load_dword v{vtk}, v{t1}, s[{P_DBG}:{P_DBG+1}] sc1
        s_waitcnt vmcnt(0)
        s_cmp_lt_u32 s{sspin}, {SPIN}
        s_cbranch_scc1 L_tok""")
        a.label("L_tok_ok")
        a(f"s_mov_b64 exec, 1\nds_write_b32 v{vmisc}, v{vtk}\ns_mov_b64 exec, -1")
    if c in (0, 12):
        for n_, tx in dl: a(tx); issued.extend(n_)
        dl = []
    if c == 0: bg = setup0.l + setup1
    if c == 10:
        a(f"s_lshr_b32 s{spb}, s{sd_}, 7\ns_lshl_b32 s{spb}, s{spb}, 7\ns_add_u32 s{spb}, s{spb}, {WS_FU}")
        a(f"s_mov_b32 exec_hi, 0\nbuffer_load_dword v{vpoll}, v{vfl}, s[{WS}:{WS+3}], s{spb} offen sc1\ns_mov_b64 exec, -1"); issued.append("pollu")
    if c == 12:
        a("\n".join(tile_io(3)))
        wait_ops(["pollu"], aux_all=True)
        poll_flags(vpoll, vfl, spb, 32, first_issued=True)
        a(uload.replace(f"s{sxb},", f"s{spa},").replace(f"s{sxb} ", f"s{spa} ")); issued.extend(["u0", "u1"])
        bg = addr2
    if c == 13:
        a("s_waitcnt lgkmcnt(0)\ns_setprio 3")
        for t_ in (1, 2, 3):
            for i in range(4): a(f"v_mfma_f32_16x16x32_bf16 {vr(kc[t_ - 1], 4)}, {vr(FA[t_ - 1][i], 4)}, {vr(FB[i], 4)}, {vr(kc[t_ - 1], 4) if i else 0}")
        a("s_setprio 0")
        a("\n".join(zero_blk))
        a(f"""ds_write_b128 v{ka}, {vr(kc[0], 4)}
        ds_write_b128 v{ka+1}, {vr(kc[1], 4)} offset:1024
        ds_write_b64 v{ka+2}, {vr(kc[2], 2)} offset:2048
        ds_write_b64 v{ka+2}, {vr(kc[2] + 2, 2)} offset:{2048 + 128}""")
        lds_signal(vmisc, vone, 16)
    a("\n".join(merge(bg, [tx for _, tx in dl])))
    for n_, _ in dl: issued.extend(n_)
    wait_ops(chunk_ops(min(c + 1, 15) if c < 13 else 15))
    a("s_barrier")
    if OPT["tick"] == 2 and c < 13: S()
S()
issued = []
wd_voff(vod); wd_groups(slw, False); a(f"s_lshl_b32 s{sl2k}, s{slw}, 11")
a(f"s_bitcmp1_b32 s{slw}, 0\ns_cbranch_scc1 L_exp1")
a(f"""v_lshlrev_b32 v{xa_}, 4, v{lane}
v_add_u32 v{xa_}, s{sxb}, v{xa_}
v_lshlrev_b32 v{xa_+1}, 3, v{lane}
v_add_u32 v{xa_+1}, s{sxb}, v{xa_+1}
v_add_u32 v{xa_+2}, s{sxb}, v{vfl}
v_and_b32 v{t1}, 1, v{lane}
v_cmp_eq_u32 vcc, 0, v{t1}""")
lds_wait(vmisc, t0, 16, 4)
for pa in range(2):
    off = pa * TBS; e = E[4 * pa:4 * pa + 4]
    a(f"""ds_read_b128 {vr(e[0], 4)}, v{xa_} offset:{off}
    ds_read_b64 {vr(e[1], 2)}, v{xa_+1} offset:{off + 1024}
    ds_read_b32 v{e[1]+2}, v{xa_+1} offset:{off + 1032}
    ds_read_b32 v{e[2]}, v{xa_+2} offset:{off + 1536}
    ds_read_b32 v{e[2]+1}, v{xa_+2} offset:{off + 1540}
    ds_read_b32 v{e[2]+2}, v{xa_+2} offset:{off + 1792}
    ds_read_b32 v{e[2]+3}, v{xa_+2} offset:{off + 1796}""")
a("s_waitcnt lgkmcnt(0)")
for k, n in ((0, 4), (1, 3), (2, 4)):
    for i in range(n): a(f"v_add_f32 v{E[k]+i}, v{E[k]+i}, v{E[4+k]+i}")
a(f"v_cndmask_b32 v{E[3]}, v{E[2]+1}, v{E[2]}, vcc\nv_cndmask_b32 v{E[3]+1}, v{E[2]+3}, v{E[2]+2}, vcc")
a("\n".join(put(0, E[0], E[0] + 1, E[0] + 2, E[0] + 3) + put(1, E[1], E[1], E[1] + 1, E[1] + 2) + put(2, E[2], E[2], E[3], E[2] + 1) + put(3, E[2] + 2, E[2] + 2, E[3] + 1, E[2] + 3)))
a("s_branch L_expd")
a.label("L_exp1")
a(f"""v_add_u32 v{xa_+1}, 1, v{lane}
v_lshrrev_b32 v{xa_+1}, 1, v{xa_+1}
v_and_b32 v{xa_}, 1, v{lane}
v_xor_b32 v{xa_}, -1, v{xa_}
v_and_b32 v{xa_}, v{xa_}, v{xa_+1}
v_lshlrev_b32 v{xa_}, 2, v{xa_}
v_lshlrev_b32 v{xa_+1}, 2, v{xa_+1}
v_add_u32 v{xa_}, s{sxb}, v{xa_}
v_add_u32 v{xa_+1}, s{sxb}, v{xa_+1}""")
lds_wait(vmisc, t0, 16, 4)
for pa in range(2):
    for b in range(4):
        off = pa * TBS + 2048 + 128 * b
        a(f"ds_read_b32 v{E[2*pa]+b}, v{xa_} offset:{off}\nds_read_b32 v{E[2*pa+1]+b}, v{xa_+1} offset:{off}")
    if pa == 0: a("s_waitcnt lgkmcnt(4)")
a("s_waitcnt lgkmcnt(0)")
for k in range(2):
    for b in range(4): a(f"v_add_f32 v{E[k]+b}, v{E[k]+b}, v{E[2+k]+b}")
for b in range(4): a("\n".join(put(4 + b, E[0] + b, E[1] + b, E[1] + b, E[1] + b)))
a.label("L_expd")
a(f"s_waitcnt vmcnt(0)\nds_write_b128 v{vu}, {vr(ul[0], 4)} offset:128\nds_write_b128 v{vu}, {vr(ul[1], 4)} offset:{128 + 512}")
lds_signal(vmisc, vone, 20)
if OPT["fin"]: S()
lds_wait(vmisc, t0, 20, 8)
S()
pre = []
for k, x in enumerate([rdB(0, r) for r in range(16)] + [rdA(0, s_) for s_ in range(NA)]):
    pre.append(x)
    if k % 4 == 3: pre.append("s_waitcnt lgkmcnt(6)")
a("\n".join(merge(pre, [tx for n in range(12) for _, tx in l_wd(n)])))
a("s_waitcnt vmcnt(0)")
lds_signal(vmisc, vone, 4)
S()
lds_wait(vmisc, t0, 24, 4)
S()
extra = []
seq = [x for pair in zip([("A", 0, s) for s in range(NA, 16)], [("B", 1, r) for r in range(15, 7, -1)]) for x in pair]
seq += [x for pair in zip([("A", 1, s) for s in range(8)], [("B", 1, r) for r in range(7, -1, -1)]) for x in pair]
seq += [("A", 1, s) for s in range(8, 16)]
mm = [(ph, s, q) for ph in range(2) for s in range(16) for q in range(s // 2, 8)]
last_use = {}
for k, (ph, s, q) in enumerate(mm):
    last_use[("A", ph, s)] = k; last_use[("B", ph, 2 * q - s + 1)] = k
def prev_owner(x):
    kind, ph, i = x
    if kind == "B": return ("B", 0, i)
    t = ph * 16 + i - NA
    return ("A", t // 16, t % 16)
pos = {x: k for k, x in enumerate(seq)}
nis = 0; waited = -1; lds_extra = 0
for k, (ph, s, q) in enumerate(mm):
    r = 2 * q - s + 1
    needk = max(pos.get(("A", ph, s), -1), pos.get(("B", ph, r), -1))
    assert needk < nis, (needk, nis, ph, s, q)
    if needk > waited:
        a(f"s_waitcnt lgkmcnt({2 * (nis - 1 - needk)})"); waited = needk
    a(f"v_mfma_f32_16x16x32_bf16 {vr(cacc[q], 4)}, {vr(A[s % NA], 4)}, {vr(B[r], 4)}, {vr(cacc[q], 4) if (ph or s) else 0}")
    while nis < len(seq) and last_use[prev_owner(seq[nis])] <= k:
        if nis - 1 - waited >= 7:
            a("s_waitcnt lgkmcnt(6)"); waited = nis - 1 - 3
        kind, p_, i = seq[nis]; a(rdA(p_, i) if kind == "A" else rdB(p_, i)); nis += 1
    if k % OPT["dgap"] == 0 and extra:
        n_, tx = extra.pop(0); a(tx); issued.append(n_)
assert nis == len(seq) and not extra
S()
a(f"""s_lshl_b32 s{st}, s{slw}, 13
s_add_u32 s{st}, s{st}, {L_R}
v_lshlrev_b32 v{t0}, 4, v{lane}
v_add_u32 v{t1}, s{st}, v{t0}""")
for q in range(8): a(f"ds_write_b128 v{t1}, {vr(cacc[q], 4)} offset:{q * 1024}")
lds_signal(vmisc, vone, 12)
a(f"""s_lshl_b32 s{st2}, s{slw}, 11
s_add_u32 s{st2}, s{st2}, {L_R}
v_add_u32 v{t1}, s{st2}, v{t0}
v_subrev_u32 v{t2}, 16, v{lane}
v_cmp_gt_u32 vcc, 16, v{lane}
v_add_u32 v{t3}, 47, v{lane}
s_add_u32 s{st2}, s{st2}, {8192 + 12}
v_cndmask_b32 v{t2}, v{t2}, v{t3}, vcc
v_cmp_eq_u32 vcc, 0, v{lane}
v_lshlrev_b32 v{vA}, 6, v{idx}
v_lshl_add_u32 v{vA}, v{g}, 4, v{vA}
v_cndmask_b32 v{t2}, v{t2}, -1, vcc
v_lshlrev_b32 v{t2}, 4, v{t2}
v_add_u32 v{t2}, s{st2}, v{t2}""")
for k in range(4):
    a(f"v_mov_b32 v{A[k]+1}, v{vtk}\nv_mov_b32 v{A[k]+3}, v{vtk}")
lds_wait(vmisc, t0, 12, 4)
RA = B
for qq in range(2):
    for dd in range(2):
        k = 6 * qq + 3 * dd
        a(f"""ds_read_b128 {vr(RA[k], 4)}, v{t1} offset:{dd * 16384 + qq * 1024}
        ds_read_b128 {vr(RA[k+1], 4)}, v{t1} offset:{dd * 16384 + 8192 + qq * 1024}
        ds_read_b32 v{RA[k+2]}, v{t2} offset:{dd * 16384 + qq * 1024}""")
a(f"""s_lshl_b32 s{st}, s2, 14
s_lshl_b32 s{st2}, s{slw}, 12
s_add_u32 s{st}, s{st}, s{st2}
s_add_u32 s{st}, s{st}, {WS_Y2}
v_cmp_eq_u32 vcc, 256, v0
s_waitcnt lgkmcnt(0)""")
for dd in range(2): a(f"v_cndmask_b32 v{RA[3*dd+2]}, v{RA[3*dd+2]}, 0, vcc")
for qq in range(2):
    for dd in range(2):
        k = 6 * qq + 3 * dd
        a(f"v_add_f32 v{RA[k]}, v{RA[k]}, v{RA[k+2]}")
        for v in range(1, 4): a(f"v_add_f32 v{RA[k]+v}, v{RA[k]+v}, v{RA[k+1]+v-1}")
    k = 6 * qq
    for v in range(4): a(f"v_cvt_pk_bf16_f32 v{A[2*qq + (v >> 1)] + 2 * (v & 1)}, v{RA[k]+v}, v{RA[k+3]+v}")
    for hh in range(2):
        a(f"buffer_store_dwordx4 {vr(A[2*qq + hh], 4)}, v{vA}, s[{WS}:{WS+3}], s{st} offen offset:{qq * 2048 + hh * 1024} sc1")
S()
if DIAG: a("s_waitcnt vmcnt(0)"); S()
S.flush(t0)
a.label("L_end")

rep = []
bodytxt = a.finish(rep)
print("vgprs C", vhiC, "L", V.hi, "sgprs", S_.hi, "nops", len(rep), file=sys.stderr)
if os.environ.get("V"):
    for r in rep: print("   ", r, file=sys.stderr)
nm = NAME + "_kernel"
s = f"""; gated mix of an S4 long-convolution branch and a sigmoid-GLU branch, one persistent launch (generated by gen/gen7.py)
; @launch grid=(256,1,1) block=(512,1,1) lds={LDS_BYTES}
.amdgcn_target "amdgcn-amd-amdhsa--gfx950"
.text
.globl {nm}
.p2align 8
.type {nm},@function
{nm}:
{bodytxt}
    s_endpgm
.section .rodata,"a"
.p2align 6
.amdhsa_kernel {nm}
  .amdhsa_next_free_vgpr 256
  .amdhsa_next_free_sgpr 100
  .amdhsa_accum_offset 256
  .amdhsa_group_segment_fixed_size 0
  .amdhsa_kernarg_size 136
  .amdhsa_user_sgpr_count 2
  .amdhsa_user_sgpr_kernarg_segment_ptr 1
  .amdhsa_system_sgpr_workgroup_id_x 1
.end_amdhsa_kernel
"""
open(sys.argv[1], "w").write(s)
```
